```python
import torch

def _softmax(x, axis=-1):
    return torch.softmax(x, dim=axis)
def _gelu(x):
    return torch.nn.functional.gelu(x, approximate="tanh")
def _silu(x):
    return torch.nn.functional.silu(x)
def _sigmoid(x):
    return torch.sigmoid(x)
def _layernorm(x, axis=-1, eps=1e-5):
    m = x.mean(dim=axis, keepdim=True)
    v = x.var(dim=axis, keepdim=True, unbiased=False)
    return (x - m) / torch.sqrt(v + eps)
def _scatter_add(tgt, idx, src, axis=0):
    return tgt.clone().index_add_(axis, idx, src)
def _segment_sum(src, seg, n):
    out = torch.zeros((n,) + src.shape[1:], dtype=src.dtype)
    return out.index_add_(0, seg, src)
def _pad(x, pw):
    flat = tuple(v for pair in reversed(pw) for v in pair)
    return torch.nn.functional.pad(x, flat)

kernel_name = 'sequential_preLN__compressed_kv_cla__dense_activation_silu__prompt'

def setup_inputs():

    _w = (lambda a: (lambda t: t.to(torch.bfloat16) if t.is_floating_point() else t)(torch.as_tensor(a)))
    def _A_setup():
        B, H, Sq, Sk, D, M = 1, 32, 2048, 2048, 128, 1024
        Dc = 4 * D
        return {
            "x": _w((lambda *s: torch.randn(*s, dtype=torch.bfloat16) * 0.05)(B, Sq, M)),
            "c_kv": _w((lambda *s: torch.randn(*s, dtype=torch.bfloat16) * 0.4)(B, Sk, Dc)),
            "w_q": _w((lambda *s: torch.randn(*s, dtype=torch.bfloat16) * 1.6)(M, H, D) * (M ** -0.5)),
            "w_uk": _w((lambda *s: torch.randn(*s, dtype=torch.bfloat16) * 1.6)(Dc, H, D) * (Dc ** -0.5)),
            "w_uv": _w((lambda *s: torch.randn(*s, dtype=torch.bfloat16) * 0.4)(Dc, H, D) * (Dc ** -0.5)),
            "w_o": _w((lambda *s: torch.randn(*s, dtype=torch.bfloat16) * 0.4)(H, D, M) * ((H * D) ** -0.5)),
        }
    _A_in = _A_setup()

    def _B_setup():
        B, S, D, F = 1, 2048, 1024, 3584
        return {
            "x": _w((lambda *s: torch.randn(*s, dtype=torch.bfloat16) * 0.05)(B, S, D)),
            "w1": _w((lambda *s: torch.randn(*s, dtype=torch.bfloat16) * 0.8)(D, F) * (D ** -0.5)),
            "w2": _w((lambda *s: torch.randn(*s, dtype=torch.bfloat16) * 0.1)(F, D) * (F ** -0.5)),
        }
    _B_in = _B_setup()

    return {
        "A_x": _A_in["x"],
        "A_c_kv": _A_in["c_kv"],
        "A_w_q": _A_in["w_q"],
        "A_w_uk": _A_in["w_uk"],
        "A_w_uv": _A_in["w_uv"],
        "A_w_o": _A_in["w_o"],
        "B_x": _B_in["x"],
        "B_w1": _B_in["w1"],
        "B_w2": _B_in["w2"],
    }

def reference(A_x, A_c_kv, A_w_q, A_w_uk, A_w_uv, A_w_o, B_x, B_w1, B_w2):
    def _A_ref(x, c_kv, w_q, w_uk, w_uv, w_o):
        B, Sq, M = x.shape[0], x.shape[1], x.shape[2]
        Sk = c_kv.shape[1]
        H, D = w_q.shape[1], w_q.shape[2]
        q = torch.einsum("bqm,mhd->bhqd", x, w_q)
        k = torch.einsum("bkc,chd->bhkd", c_kv, w_uk)
        v = torch.einsum("bkc,chd->bhkd", c_kv, w_uv)
        scores = torch.einsum("bhqd,bhkd->bhqk", q, k) * (D ** -0.5)
        off = Sk - Sq
        qi = torch.arange(Sq)[:, None]
        kj = torch.arange(Sk)[None, :]
        cmask = kj <= (qi + off)
        scores = torch.where(cmask[None, None], scores, -1e9)
        p = _softmax(scores, axis=-1)
        ctx = torch.einsum("bhqk,bhkd->bhqd", p, v)
        return torch.einsum("bhqd,hdm->bqm", ctx, w_o)

    def _B_ref(x, w1, w2):
        h = torch.einsum("bsd,df->bsf", x, w1)
        h = _silu(h)
        out = torch.einsum("bsf,fd->bsd", h, w2)
        return out

    x = A_x
    h = x + _A_ref(_layernorm(x, axis=-1), A_c_kv, A_w_q, A_w_uk, A_w_uv, A_w_o)
    h2 = h + _B_ref(_layernorm(h, axis=-1), B_w1, B_w2)
    return h2
```

```python
import re

def vr(b, n=1, p="v"):
    return "%s%d" % (p, b) if n == 1 else "%s[%d:%d]" % (p, b, b + n - 1)
def ar(b, n=1):
    return vr(b, n, "a")
def sr(b, n=1):
    return vr(b, n, "s")

_REG = re.compile(r"^(-|abs\()?([vas])(?:(\d+)|\[(\d+):(\d+)\])\)?$")
def regs_of(op):
    op = op.strip()
    if op in ("vcc",): return {("s", 106), ("s", 107)}
    if op in ("exec",): return {("s", 126), ("s", 127)}
    if op == "m0": return {("s", 124)}
    if op == "vcc_lo": return {("s", 106)}
    m = _REG.match(op.replace("|", ""))
    if not m: return set()
    p = m.group(2)
    if m.group(3) is not None: return {(p, int(m.group(3)))}
    return {(p, i) for i in range(int(m.group(4)), int(m.group(5)) + 1)}

TRANS = ("v_exp_f32", "v_log_f32", "v_rcp_f32", "v_rsq_f32", "v_sqrt_f32", "v_sin_f32", "v_cos_f32")

class I:
    def __init__(self, text, tag=None):
        self.text = text
        self.tag = tag
        t = text.split(";")[0].strip()
        self.label = t.endswith(":")
        self.kind = None
        self.w = set(); self.r = set()
        self.srcC = set(); self.srcAB = set()
        self.ws = 1
        if self.label or not t or t.startswith("."):
            self.kind = "label"; self.ws = 0; self.op = ""
            return
        sp = t.split(None, 1)
        op = sp[0]; self.op = op
        rest = sp[1] if len(sp) > 1 else ""
        ops = [o.strip() for o in rest.split(",")] if rest else []
        mods = ""
        if ops:
            l = ops[-1].split()
            ops[-1] = l[0]; mods = " ".join(l[1:])
        self.ops = ops; self.mods = mods
        R = lambda i: regs_of(ops[i]) if i < len(ops) else set()
        EXEC = {("s", 126), ("s", 127)}
        if op.startswith("v_mfma"):
            self.kind = "mfma"; self.w = R(0); self.srcAB = R(1) | R(2); self.srcC = R(3)
            self.r = self.srcAB | self.srcC
            self.passes = 8 if "32x32x16" in op else 4
        elif op.startswith("ds_read") or op.startswith("ds_bpermute") or op.startswith("ds_swizzle"):
            self.kind = "ds"; self.w = R(0); self.r = set().union(*[R(i) for i in range(1, len(ops))])
        elif op.startswith("ds_write") or op.startswith("ds_add"):
            self.kind = "ds"; self.r = set().union(*[R(i) for i in range(len(ops))])
        elif op.startswith("buffer_load"):
            self.kind = "vm"
            if "lds" in mods.split():
                self.dma = True; self.r = R(0) | R(1) | R(2) | {("s", 124)}
            else:
                self.w = R(0); self.r = R(1) | R(2) | R(3)
        elif op.startswith("buffer_store") or op.startswith("buffer_atomic"):
            self.kind = "vm"; self.store = True; self.data = R(0)
            self.r = R(0) | R(1) | R(2) | R(3)
            if op.startswith("buffer_atomic") and "sc0" in mods.split(): self.w = R(0)
        elif op.startswith("global_load"):
            self.kind = "vm"; self.w = R(0); self.r = R(1) | R(2)
        elif op.startswith("global_store") or op.startswith("global_atomic"):
            self.kind = "vm"; self.store = True; self.data = R(1); self.r = R(0) | R(1) | R(2)
        elif op in ("buffer_inv", "buffer_wbl2"):
            self.kind = "vm"
        elif op.startswith("s_load") or op.startswith("s_memtime") or op.startswith("s_memrealtime"):
            self.kind = "smem"; self.w = R(0); self.r = R(1)
        elif op == "s_nop":
            self.kind = "nop"; self.ws = int(ops[0], 0) + 1
        elif op == "s_waitcnt":
            self.kind = "wait"
            self.vm = self.lg = None
            m = re.search(r"vmcnt\((\d+)\)", rest); self.vm = int(m.group(1)) if m else None
            m = re.search(r"lgkmcnt\((\d+)\)", rest); self.lg = int(m.group(1)) if m else None
        elif op.startswith("s_cbranch") or op in ("s_branch", "s_barrier", "s_endpgm", "s_setprio", "s_sleep"):
            self.kind = "ctl"
            if "vcc" in op: self.r = {("s", 106), ("s", 107)}
        elif op.startswith("s_cmp") or op.startswith("s_bitcmp"):
            self.kind = "salu"; self.r = R(0) | R(1)
        elif op.startswith("s_"):
            self.kind = "salu"; self.w = R(0); self.r = set().union(*[R(i) for i in range(1, len(ops))]) if len(ops) > 1 else set()
            if "saveexec" in op: self.w |= EXEC
            if op.startswith("s_addk") or op.startswith("s_mulk"): self.r |= R(0)
        elif op.startswith("v_"):
            self.kind = "valu"
            self.trans = any(op.startswith(x) for x in TRANS)
            self.dpp = ("_dpp" in op) or ("row_" in mods) or ("quad_perm" in mods)
            self.perm = op.startswith("v_permlane")
            self.rl = op.startswith("v_readfirstlane") or op.startswith("v_readlane")
            self.w = R(0); self.r = set().union(*[R(i) for i in range(1, len(ops))]) if len(ops) > 1 else set()
            if self.perm: self.w = R(0) | R(1); self.r = R(0) | R(1)
            if op.startswith("v_fmac") or op.startswith("v_pk_fmac") or op.startswith("v_dot2c") or self.dpp: self.r |= R(0)
            if op.startswith("v_cndmask") and len(ops) == 3: self.r |= {("s", 106), ("s", 107)}
            if op.startswith("v_cmpx"): self.w |= EXEC
            if op.startswith("v_add_co") or op.startswith("v_addc_co") or op.startswith("v_sub_co"):
                self.w = R(0) | R(1); self.r = set().union(*[R(i) for i in range(2, len(ops))])
        else:
            raise ValueError("unknown instr: " + text)

def check_path(instrs, name="", verbose=True):
    probs = []
    n = len(instrs)
    def P(i, j, msg):
        probs.append("%s: [%d] '%s' -> [%d] '%s': %s" % (name, i, instrs[i].text.strip(), j, instrs[j].text.strip(), msg))
    for j, c in enumerate(instrs):
        if c.kind in ("label", "nop", "wait"): continue
        d = 0
        i = j - 1
        while i >= 0 and d < 21:
            p = instrs[i]
            need = 0
            if p.kind == "valu":
                vw = {x for x in p.w if x[0] != "s"}; sw = {x for x in p.w if x[0] == "s"}
                if c.kind == "mfma" and vw & c.r: need = max(need, 2)
                if c.kind == "valu":
                    if c.rl and vw & c.r: need = max(need, 1)
                    if (c.dpp or c.perm) and vw & c.r: need = max(need, 2)
                    if p.trans and not c.trans and vw & (c.r): need = max(need, 1)
                    if sw & c.r: need = max(need, 2)
                    if c.dpp and ("s", 126) in sw: need = max(need, 5)
                    if c.rl and ("s", 126) in sw: need = max(need, 4)
                if c.kind == "vm" and sw & c.r: need = max(need, 5)
                if c.kind == "mfma" and ("s", 126) in sw: need = max(need, 4)
            elif p.kind == "mfma":
                big = {4: 8, 8: 12}[p.passes]
                if c.kind == "mfma":
                    if p.w & c.srcAB: need = max(need, big)
                    if p.w & c.srcC and not (p.w == c.srcC and p.passes == c.passes): need = max(need, big - 2)
                    if p.w & c.w and not (p.w == c.srcC and p.w == c.w): need = max(need, big - 2)
                elif c.kind in ("valu", "vm", "ds"):
                    if p.w & (c.r | c.w): need = max(need, big)
                    if c.kind == "valu" and p.srcC & c.w: need = max(need, {4: 3, 8: 7}[p.passes])
            elif p.kind == "salu":
                if ("s", 124) in p.w and c.kind == "vm" and getattr(c, "dma", False): need = max(need, 1)
            elif p.kind == "vm" and getattr(p, "store", False) and len(p.data) >= 3:
                if p.data & c.w and c.kind in ("valu", "mfma"): need = max(need, 2)
                elif p.data & c.w: need = max(need, 1)
            if need > d: P(i, j, "needs %d wait states, has %d" % (need, d))
            d += p.ws
            i -= 1
    lg = []; vm = []
    for j, c in enumerate(instrs):
        if c.kind == "wait":
            if c.vm is not None:
                while len(vm) > c.vm: vm.pop(0)
            if c.lg is not None:
                if any(k == "smem" for (_, k, _) in lg) and c.lg != 0:
                    probs.append("%s: [%d] counted lgkmcnt with smem outstanding" % (name, j))
                while len(lg) > c.lg: lg.pop(0)
            continue
        if c.kind in ("label", "nop"): continue
        touched = c.r | c.w
        for (regs, k, i) in lg:
            if regs & touched: P(i, j, "lgkm result not waited")
        for (regs, k, i) in vm:
            if regs & touched: P(i, j, "vm result not waited")
        need = getattr(c, "needtag", None)
        if need is not None:
            for (regs, k, i) in vm:
                if instrs[i].tag == need: P(i, j, "dma tag %s not waited" % str(need))
        if c.op == "s_barrier":
            pass
        if c.kind == "ds": lg.append((set(c.w), "ds", j))
        elif c.kind == "smem": lg.append((set(c.w), "smem", j))
        elif c.kind == "vm": vm.append((set(c.w), "vm", j))
        if len(lg) > 15 and False: probs.append("lgkm overflow")
        if len(vm) > 63: probs.append("%s: [%d] vmcnt overflow" % (name, j))
    return probs

class Seg:
    def __init__(self, name=""):
        self.name = name
        self.ins = []
    def __call__(self, s, tag=None):
        for l in s.split("\n"):
            l = l.strip()
            if l:
                self.ins.append(I(l, tag))
        return self
    def add(self, other):
        self.ins += other.ins if isinstance(other, Seg) else other
    def c(self, s):
        self.ins.append(I("; " + s))

def auto_lgkm(ins, pending):
    out = []
    pend = [set(x) for x in pending]
    for c in ins:
        if c.kind == "wait":
            if c.lg is not None:
                while len(pend) > c.lg: pend.pop(0)
            out.append(c); continue
        if c.kind in ("label", "nop"):
            out.append(c); continue
        touched = c.r | c.w
        last = -1
        for k, regs in enumerate(pend):
            if regs & touched: last = k
        if last >= 0:
            nleft = len(pend) - 1 - last
            nleft = min(nleft, 15)
            out.append(I("s_waitcnt lgkmcnt(%d)" % nleft))
            while len(pend) > nleft: pend.pop(0)
        if c.kind == "ds": pend.append(set(c.w))
        assert c.kind != "smem", "smem inside auto_lgkm region"
        out.append(c)
    return out, pend

class WaitTag(I):
    def __init__(self, tag, lg0=False):
        I.__init__(self, "s_nop 0")
        self.kind = "waittag"; self.wtag = tag; self.lg0 = lg0

class WaitRegs(I):
    def __init__(self, regs):
        I.__init__(self, "s_nop 0")
        self.kind = "waitregs"; self.regs = set(regs)

def auto_waits(ins, plg, pvm):
    out = []
    plg = [set(x) for x in plg]; pvm = [(set(x), t) for (x, t) in pvm]
    def emit(nv, nl):
        parts = []
        if nv is not None:
            parts.append("vmcnt(%d)" % min(nv, 63))
            while len(pvm) > min(nv, 63): pvm.pop(0)
        if nl is not None:
            parts.append("lgkmcnt(%d)" % min(nl, 15))
            while len(plg) > min(nl, 15): plg.pop(0)
        if parts: out.append(I("s_waitcnt " + " ".join(parts)))
    for c in ins:
        if c.kind == "waitregs":
            ll = -1; lv = -1
            for k, regs in enumerate(plg):
                if regs & c.regs: ll = k
            for k, (regs, t) in enumerate(pvm):
                if regs & c.regs: lv = k
            emit(len(pvm) - 1 - lv if lv >= 0 else None, len(plg) - 1 - ll if ll >= 0 else None)
            continue
        if c.kind == "waittag":
            last = -1
            for k, (regs, t) in enumerate(pvm):
                if t is not None and t <= c.wtag: last = k
            emit(len(pvm) - 1 - last if last >= 0 else None, 0 if c.lg0 else None)
            continue
        if c.kind == "wait":
            if c.lg is not None:
                while len(plg) > c.lg: plg.pop(0)
            if c.vm is not None:
                while len(pvm) > c.vm: pvm.pop(0)
            out.append(c); continue
        if c.kind in ("label", "nop"):
            out.append(c); continue
        touched = c.r | c.w
        ll = -1; lv = -1
        for k, regs in enumerate(plg):
            if regs & touched: ll = k
        for k, (regs, t) in enumerate(pvm):
            if regs & touched: lv = k
        emit(len(pvm) - 1 - lv if lv >= 0 else None, len(plg) - 1 - ll if ll >= 0 else None)
        if c.kind == "ds": plg.append(set(c.w) | set(getattr(c, "also", ())))
        if c.kind == "vm": pvm.append((set(c.w) | set(getattr(c, "also", ())), c.tag))
        assert c.kind != "smem", "smem inside auto_waits region"
        out.append(c)
    return out, plg, pvm

def shift_tags(pvm, d):
    return [(r, None if t is None else t - d) for (r, t) in pvm]

class Asm:
    def __init__(self):
        self.lines = []
        self.launches = []
        self.kds = []
        self._lab = 0
    def __call__(self, s):
        for l in s.split("\n"):
            l = l.strip()
            if l:
                self.lines.append(("    " if not l.endswith(":") else "") + l)
    def seg(self, s):
        for i in (s.ins if isinstance(s, Seg) else s):
            self(i.text)
    def c(self, s):
        self.lines.append("    ; " + s)
    def label(self, base="L"):
        self._lab += 1
        return "%s_%d" % (base, self._lab)
    def kernel(self, name):
        self.lines.append(".globl %s" % name)
        self.lines.append(".p2align 8")
        self.lines.append(".type %s,@function" % name)
        self.lines.append("%s:" % name)
    def kd(self, name, vgpr, accum, sgpr=96):
        self.kds.append((name, vgpr, accum, sgpr))
    def launch(self, name, grid, block, lds):
        self.launches.append((name, grid, block, lds))
    def text(self, header=""):
        o = []
        if header: o.append(header.rstrip("\n"))
        for (n, g, b, l) in self.launches:
            o.append("; @launch kernel=%s grid=(%d,1,1) block=(%d,1,1) lds=%d" % (n, g, b, l))
        o.append('.amdgcn_target "amdgcn-amd-amdhsa--gfx950"')
        o.append(".text")
        o += self.lines
        o.append('.section .rodata,"a"')
        for (n, v, a, s) in self.kds:
            o.append(".p2align 6")
            o.append(".amdhsa_kernel %s" % n)
            o.append("  .amdhsa_next_free_vgpr %d" % v)
            o.append("  .amdhsa_next_free_sgpr %d" % s)
            o.append("  .amdhsa_accum_offset %d" % a)
            o.append("  .amdhsa_group_segment_fixed_size 0")
            o.append("  .amdhsa_kernarg_size 96")
            o.append("  .amdhsa_user_sgpr_count 2")
            o.append("  .amdhsa_user_sgpr_kernarg_segment_ptr 1")
            o.append("  .amdhsa_system_sgpr_workgroup_id_x 1")
            o.append("  .amdhsa_float_denorm_mode_32 3")
            o.append("  .amdhsa_float_denorm_mode_16_64 3")
            o.append(".end_amdhsa_kernel")
        return "\n".join(o) + "\n"

def interleave(mfmas, fillers, start=0, per=None, lead=0):
    out = []
    f = list(fillers)
    for _ in range(min(lead, len(f))):
        x = f.pop(0); out += x if isinstance(x, list) else [x]
    n = len(mfmas) - start
    tot = len(f)
    done = 0
    for i, m in enumerate(mfmas):
        out.append(m)
        if i >= start:
            k = i - start + 1
            want = (tot * k + n - 1) // n if per is None else min(tot, per * k)
            while done < want:
                x = f[done]; out += x if isinstance(x, list) else [x]
                done += 1
    while done < tot:
        x = f[done]; out += x if isinstance(x, list) else [x]
        done += 1
    return out


def cost(x):
    if isinstance(x, list): return sum(cost(y) for y in x)
    if x.kind == "valu" and x.trans: return 2.0
    if x.kind == "waittag": return 1.0
    if x.kind == "nop": return float(x.ws)
    return 1.0

def merge(*lists):
    lists = [l for l in lists if l]
    tot = [sum(cost(x) for x in l) for l in lists]
    pos = [0] * len(lists); acc = [0.0] * len(lists)
    out = []
    while any(pos[i] < len(lists[i]) for i in range(len(lists))):
        best = min((i for i in range(len(lists)) if pos[i] < len(lists[i])), key=lambda i: (acc[i] + 0.5 * cost(lists[i][pos[i]])) / tot[i])
        x = lists[best][pos[best]]
        out.append(x); acc[best] += cost(x); pos[best] += 1
    return out

def weave(mfmas, fillers, start=0, endgap=0):
    out = []
    n = len(mfmas) - start - endgap
    tot = sum(cost(x) for x in fillers)
    done = 0.0; p = 0
    for i, m in enumerate(mfmas):
        out.append(m)
        if i >= start:
            k = min(i - start + 1, n)
            want = tot * k / n
            while p < len(fillers) and done + 0.5 * cost(fillers[p]) <= want + 1e-9:
                x = fillers[p]; out += x if isinstance(x, list) else [x]
                done += cost(x); p += 1
    while p < len(fillers):
        x = fillers[p]; out += x if isinstance(x, list) else [x]
        p += 1
    return out


def group(ins, n):
    for i in range(0, len(ins), n):
        g = ins[i:i + n]
        allw = set().union(*[x.w for x in g])
        g[-1].also = allw
    return ins


def weave2(mfmas, fillers, fixed=None):
    fixed = fixed or {}
    n = len(mfmas)
    fc = [sum(cost(x) for x in fixed.get(g, [])) for g in range(n)]
    tot = sum(cost(x) for x in fillers) + sum(fc)
    out = []; done = 0.0; p = 0
    for i, m in enumerate(mfmas):
        out.append(m)
        tailfix = [x for x in fixed.get(i, []) if getattr(x, "ghost", False)]
        for x in fixed.get(i, []):
            if not getattr(x, "ghost", False): out.append(x)
        done += fc[i]
        want = tot * (i + 1) / n
        while p < len(fillers) and (done + 0.5 * cost(fillers[p]) <= want + 1e-9 or i == n - 1):
            x = fillers[p]; out += x if isinstance(x, list) else [x]
            done += cost(x); p += 1
    return out

def ghost(n):
    o = []
    for _ in range(n):
        x = I("s_nop 0"); x.ghost = True; o.append(x)
    return o

def split_cost(seq, c):
    acc = 0.0
    for i, x in enumerate(seq):
        if acc + 0.5 * cost(x) > c: return seq[:i], seq[i:]
        acc += cost(x)
    return seq, []


def cyc(x):
    if x.kind == "valu": return 8 if x.trans else 4
    if x.kind == "vm": return 15
    if x.kind == "ctl": return 10 if x.op.startswith("s_cbranch") else 4
    if x.kind == "nop": return 4 * x.ws
    return 4

def gaps_schedule(mfmas, pre, mem, valu, post=None):
    n = len(mfmas)
    post = post or {}
    fix = []
    for i in range(n):
        c = max(0, sum(cyc(x) for x in pre.get(i, [])) - 4) + sum(cyc(x) for x in mem.get(i, [])) + sum(cyc(x) for x in post.get(i, []))
        fix.append(c)
    tot = sum(fix) + sum(cyc(x) for x in valu)
    out = []; done = 0.0; p = 0
    last = max([i for i in range(n)])
    for i, m in enumerate(mfmas):
        out.append(m)
        out += [x for x in pre.get(i, []) if not getattr(x, "ghost", False)]
        out += mem.get(i, [])
        done += fix[i]
        want = tot * (i + 1) / n
        while p < len(valu) and (done + 0.5 * cyc(valu[p]) <= want + 1e-9 or i == n - 1):
            out.append(valu[p]); done += cyc(valu[p]); p += 1
        out += [x for x in post.get(i, []) if not getattr(x, "ghost", False)]
    return out
```

```python
from asmlib import *

MB = 1 << 20
WS_XN   = 0
WS_KF   = 4 * MB
WS_VF   = 20 * MB
WS_CTX  = 36 * MB
WS_HF   = 52 * MB
WS_H1   = 56 * MB
WS_CS1  = 70 * MB
WS_ST   = 71 * MB
WS_EX3  = 72 * MB
WS_EX5  = 80 * MB
WS_END  = 88 * MB
WS_SIZE = 1 << 28
WS_STAMP = 200 * MB

P_X, P_CKV, P_WQ, P_WUK, P_WUV, P_WO, P_BX, P_W1, P_W2, P_OUT, P_DBG, P_WS = [8 * i for i in range(12)]

def srd(S, d, base, size):
    S("s_mov_b32 s%d, s%d" % (d, base))
    S("s_and_b32 s%d, s%d, 0xffff" % (d + 1, base + 1))
    S("s_mov_b32 s%d, 0x%x" % (d + 2, size))
    S("s_mov_b32 s%d, 0x20000" % (d + 3))

def srd_off(S, d, base, off, size):
    S("s_add_u32 s%d, s%d, 0x%x" % (d, base, off))
    S("s_addc_u32 s%d, s%d, 0" % (d + 1, base + 1))
    S("s_and_b32 s%d, s%d, 0xffff" % (d + 1, d + 1))
    S("s_mov_b32 s%d, 0x%x" % (d + 2, size))
    S("s_mov_b32 s%d, 0x20000" % (d + 3))

def mfma32(d, a, b, c=None):
    return I("v_mfma_f32_32x32x16_bf16 %s, %s, %s, %s" % (d, a, b, d if c is None else c))

def wave_allreduce(S, x, t, op="v_add_f32"):
    for ctl in ("quad_perm:[1,0,3,2]", "quad_perm:[2,3,0,1]", "row_half_mirror", "row_mirror"):
        S("s_nop 1")
        S("%s_dpp v%d, v%d, v%d %s row_mask:0xf bank_mask:0xf" % (op, x, x, x, ctl))
    for sw in ("v_permlane16_swap_b32", "v_permlane32_swap_b32"):
        S("v_mov_b32 v%d, v%d" % (t, x))
        S("s_nop 1")
        S("%s v%d, v%d" % (sw, x, t))
        S("s_nop 0")
        S("%s v%d, v%d, v%d" % (op, x, x, t))

def check(name, *segs):
    path = []
    for s in segs:
        path += s.ins if isinstance(s, Seg) else s
    pr = check_path(path, name)
    for p in pr[:30]:
        print("HAZARD", p)
    assert not pr, "%d problems in %s" % (len(pr), name)


STAMP = False
class Stamps:
    def __init__(self, base=72):
        self.base = base; self.n = 0
    def __call__(self, S):
        if not STAMP_ON[0]: return
        r = self.base + 2 * self.n
        S("%s s[%d:%d]\n s_waitcnt lgkmcnt(0)" % ("s_memtime" if STAMP_ON[0] == 2 else "s_memrealtime", r, r + 1))
        self.n += 1
    def flush(self, S, slot):
        if not STAMP_ON[0]: return
        self(S)
        S("s_load_dwordx2 s[70:71], s[0:1], %d" % P_WS)
        S("s_waitcnt lgkmcnt(0)")
        S("v_lshlrev_b32 v1, 2, v0")
        S("s_lshl_b32 s3, s2, 6\n s_add_u32 s3, s3, %d\n v_add_u32 v1, s3, v1" % (slot * 16384 + WS_STAMP))
        S("v_mov_b32 v2, 0")
        for i in range(self.n):
            S("v_cmp_eq_u32 vcc, %d, v0\n v_mov_b32 v3, s%d\n s_nop 1\n v_cndmask_b32 v2, v2, v3, vcc" % (i, self.base + 2 * i))
        S("v_cmp_gt_u32 vcc, 16, v0\n s_and_saveexec_b64 s[68:69], vcc\n global_store_dword v1, v2, s[70:71]\n s_mov_b64 exec, s[68:69]")
STAMP_ON = [False]
```

```python
from common import *

def flat(g):
    o = []
    for x in g: o += x if isinstance(x, list) else [x]
    return o

class XWGemm:
    def __init__(self, name, NF, nst, ACC, FW, XR, XP, XD, vX, vDW, ndma, vRW, stage_bytes, row_bytes, swz,
                 sW, sXS, sKW, sKX, sM0W, sCNT, wstep):
        self.__dict__.update(locals())
    def dmaW(self, b, t):
        g = []
        for n in range(self.ndma):
            x = []
            if n % 4 == 0:
                x += [I("s_add_u32 m0, s%d, %d" % (self.sM0W, b * self.stage_bytes + 1024 * n)), I("s_nop 0")]
            x.append(I("buffer_load_dwordx4 v%d, s[%d:%d], s%d offen offset:%d lds" % (self.vDW + n, self.sW, self.sW + 3, self.sKW, 1024 * (n & 3)), tag=t))
            if n == self.ndma - 1: x.append(I("s_add_u32 s%d, s%d, %d" % (self.sKW, self.sKW, self.wstep)))
            g.append(x)
        return g
    def xreg(self, t, s):
        return self.XR + 4 * ((4 * t + s) % self.XD)
    def xload(self, t, s):
        q = self.xreg(t, s)
        x = [I("buffer_load_dwordx4 %s[%d:%d], v%d, s[%d:%d], s%d offen offset:%d" % (self.XP, q, q + 3, self.vX, self.sXS, self.sXS + 3, self.sKX, 1024 * s))]
        if s == 3: x.append(I("s_add_u32 s%d, s%d, 4096" % (self.sKX, self.sKX)))
        return x
    def wreads(self, b, s, p):
        g = []
        for i in range(self.NF):
            for r2 in range(2):
                q = self.FW[p] + 4 * i + 2 * r2
                off = (16 * s + 8 * r2) * self.row_bytes
                if self.swz:
                    va = self.vRW + i; off += b * self.stage_bytes
                else:
                    va = self.vRW + (b >> 1); off += (b & 1) * self.stage_bytes + 64 * i
                g.append(I("ds_read_b64_tr_b16 v[%d:%d], v%d offset:%d" % (q, q + 1, va, off)))
        return group(g, 4)
    def prologue_vm(self):
        xs = self.XD // 4
        o = []
        for t in range(-max(3, xs), 0):
            for s in range(3):
                if t + xs >= 0: o += self.xload(t + xs, s)
            if t + 3 >= 0: o += flat(self.dmaW(t + 3, t + 3))
            if t + xs >= 0: o += self.xload(t + xs, 3)
        return o
    def stage(self, t, nst, extra=None):
        xs = self.XD // 4
        S = []
        for s in range(4):
            p = s & 1
            m = [mfma32(vr(self.ACC + 16 * i, 16), vr(self.FW[p] + 4 * i, 4), vr(self.xreg(t, s), 4, self.XP)) for i in range(self.NF)]
            f = []
            if s < 3: f += self.wreads(t & 3, s + 1, p ^ 1)
            elif t < nst - 1: f += self.wreads((t + 1) & 3, 0, 0)
            ex = []
            if s == 3 and t + 3 < nst: ex += self.dmaW((t + 3) & 3, t + 3)
            if extra: ex += extra(t, s)
            S += weave(m, merge(f, ex) if ex else f)
            if t + xs < nst: S += self.xload(t + xs, s)
            if s == 2 and t < nst - 1:
                S.append(WaitTag(t + 1)); S.append(I("s_barrier"))
        return S
    def emit(self, a, P, pro_vm, after_pro_vm=()):
        pvm = [(set(x.w) | set(getattr(x, "also", ())), x.tag) for x in list(pro_vm) + list(after_pro_vm) if x.kind == "vm"]
        first, plg, pvm = auto_waits([WaitTag(0), I("s_barrier")] + self.wreads(0, 0, 0), [], pvm)
        P.add(first)
        nit = self.nst // 4 - 1
        BIG = 1 << 20
        raw = lambda: sum([self.stage(t, BIG) for t in range(4)], [])
        b1, plg1, pvm1 = auto_waits(raw(), plg, pvm)
        body, plg2, pvm2 = auto_waits(raw(), plg1, shift_tags(pvm1, 4))
        t0 = self.nst - 4
        tail, plg3, pvm3 = auto_waits(sum([self.stage(t, self.nst) for t in range(t0, self.nst)], []), plg2, shift_tags(pvm2, 4 - t0))
        lt = Seg()("s_sub_u32 s%d, s%d, 1\n s_cmp_lg_u32 s%d, 0\n s_cbranch_scc1 %s_loop" % (self.sCNT, self.sCNT, self.sCNT, self.name))
        if not after_pro_vm:
            assert [x.text for x in b1] == [x.text for x in body], "first-iteration waits differ"
        a.seg(P)
        a("s_mov_b32 s%d, %d\n%s_loop:" % (self.sCNT, nit, self.name))
        a.seg(body); a.seg(lt); a.seg(tail)
        return [P, body, lt, body, lt, tail], pvm3

def wread_addr_swz(P, vL, vRW, base, xor_s=None):
    P("v_bfe_u32 v2, v%d, 2, 2" % vL)
    P("v_lshrrev_b32 v3, 5, v%d\n v_lshl_add_u32 v3, v3, 2, v2\n v_lshlrev_b32 v3, 8, v3" % vL)
    P("v_bfe_u32 v4, v%d, 4, 1\n v_lshl_add_u32 v3, v4, 5, v3" % vL)
    P("v_and_b32 v4, 3, v%d\n v_lshl_add_u32 v3, v4, 3, v3" % vL)
    if base: P("v_add_u32 v3, %d, v3" % base)
    if xor_s is not None: P("v_xor_b32 v2, s%d, v2" % xor_s)
    for i in range(4):
        P("v_xor_b32 v5, %d, v2\n v_lshl_add_u32 v%d, v5, 6, v3" % (i, vRW + i))

SENT = 0xFFFFFFFF

def gen_k35(a, which, LDS=65536):
    name = "oproj_kernel" if which == 3 else "down_kernel"
    KT = 4096 if which == 3 else 3584
    XOFF = WS_CTX if which == 3 else WS_H1
    EXOFF = WS_EX3 if which == 3 else WS_EX5
    nst = KT // 2 // 64
    end = name + "_end"
    sW, sWS, sR = 8, 16, 20
    sWV, sKH, sTB, sFT, sKW, sKX, sM0W, sCNT = 28, 29, 30, 31, 32, 33, 34, 35
    vL, vL16, vX, vDW, vRW = 1, 8, 9, 12, 16
    ACC = 32; FW = [96, 112]; XR = 128; XD = 8; RES = 160; RCV = 176; T = 208
    ST = Stamps(80)
    G = XWGemm(name, 4, nst, ACC, FW, XR, "v", XD, vX, vDW, 4, vRW, 16384, 256, True, sW, sWS, sKW, sKX, sM0W, sCNT, 64 * 2048)
    P = Seg("pro")
    P("s_cmp_ge_u32 s2, 256\n s_cbranch_scc1 %s" % end)
    ST(P)
    P("s_load_dwordx2 s[4:5], s[0:1], %d\n s_load_dwordx2 s[6:7], s[0:1], %d" % (P_WO if which == 3 else P_W2, P_WS))
    P("s_load_dwordx2 s[24:25], s[0:1], %d" % (P_X if which == 3 else P_OUT))
    P("v_and_b32 v%d, 63, v0\n v_lshrrev_b32 v2, 6, v0" % vL)
    P("s_and_b32 s%d, s2, 1\n s_lshr_b32 s3, s2, 3" % sKH)
    P("v_readfirstlane_b32 s%d, v2" % sWV)
    P("s_lshl_b32 s36, s2, 2\n s_and_b32 s36, s36, 8\n s_and_b32 s37, s3, 7\n s_add_u32 s36, s36, s37")
    P("s_and_b32 s%d, s2, 4\n s_lshr_b32 s3, s3, 3\n s_add_u32 s%d, s%d, s3" % (sFT, sFT, sFT))
    P("s_lshl_b32 s%d, s36, 2\n s_add_u32 s%d, s%d, s%d" % (sTB, sTB, sTB, sWV))
    P("v_lshlrev_b32 v%d, 4, v%d" % (vL16, vL))
    P("s_mul_i32 s3, s%d, %d\n s_mul_i32 s36, s%d, %d\n s_add_u32 s3, s3, s36\n s_add_u32 s3, s3, %d\n v_add_u32 v%d, s3, v%d" % (sTB, KT * 64, sKH, KT * 32, XOFF, vX, vL16))
    P("v_lshrrev_b32 v2, 4, v%d\n v_and_b32 v3, 15, v%d\n v_lshlrev_b32 v4, 2, v2\n v_xor_b32 v3, v3, v4" % (vL, vL))
    P("s_lshl_b32 s3, s%d, 4\n s_mul_i32 s36, s%d, %d\n s_add_u32 s3, s3, s36\n v_add_u32 v2, s3, v2\n v_lshlrev_b32 v2, 11, v2\n v_lshl_add_u32 v2, v3, 4, v2" % (sWV, sKH, KT // 2))
    P("s_lshl_b32 s3, s%d, 8\n v_add_u32 v2, s3, v2" % sFT)
    for n in range(4):
        P("v_add_u32 v%d, %d, v2" % (vDW + n, 4 * 2048 * n - 1024 * n))
    P("s_lshl_b32 s%d, s%d, 12\n s_mov_b32 s%d, 0\n s_mov_b32 s%d, 0" % (sM0W, sWV, sKW, sKX))
    P("s_waitcnt lgkmcnt(0)")
    srd(P, sW, 4, KT * 2048)
    srd(P, sWS, 6, WS_END)
    srd(P, sR, 24, 2048 * 2048)
    pro = G.prologue_vm()
    P.add(pro)
    P("s_lshl_b32 s3, s%d, 1" % sKH)
    wread_addr_swz(P, vL, vRW, 0, 3)
    for i in range(64): P("v_mov_b32 v%d, 0" % (ACC + i))
    vRM, vHF, vEX = 10, 11, 20
    P("v_and_b32 v2, 31, v%d\n s_lshl_b32 s3, s%d, 5\n v_add_u32 v2, s3, v2\n v_lshlrev_b32 v2, 11, v2" % (vL, sTB))
    P("v_lshrrev_b32 v3, 5, v%d\n v_lshl_add_u32 v2, v3, 4, v2" % vL)
    P("s_lshl_b32 s3, s%d, 8\n s_lshl_b32 s36, s%d, 7\n s_add_u32 s3, s3, s36\n v_add_u32 v%d, s3, v2" % (sFT, sKH, vRM))
    P("s_lshl_b32 s3, s%d, 16\n s_lshl_b32 s36, s%d, 13\n s_add_u32 s3, s3, s36\n s_lshl_b32 s36, s%d, 12\n s_add_u32 s3, s3, s36\n s_add_u32 s3, s3, %d\n v_add_u32 v%d, s3, v%d" % (sTB, sFT, sKH, WS_HF, vHF, vL16))
    P("s_lshl_b32 s3, s2, 2\n s_add_u32 s3, s3, s%d\n s_lshl_b32 s3, s3, 13\n s_add_u32 s38, s3, %d\n s_add_u32 s39, s38, 4096" % (sWV, EXOFF))
    P("s_xor_b32 s3, s3, 0x8000\n s_add_u32 s40, s3, %d\n s_add_u32 s41, s40, 4096" % EXOFF)
    ST(P)
    def extra(t, s):
        if t == nst - 2 and s < 4:
            q = RES + 4 * s
            if which == 3:
                return [I("buffer_load_dwordx4 v[%d:%d], v%d, s[%d:%d], 0 offen offset:%d" % (q, q + 3, vRM, sR, sR + 3, 32 * s))]
            return [I("buffer_load_dwordx4 v[%d:%d], v%d, s[%d:%d], 0 offen offset:%d" % (q, q + 3, vHF, sWS, sWS + 3, 1024 * s))]
        return []
    st0 = G.stage
    G.stage = lambda t, n, ex=None: st0(t, n, extra if n == nst else None)
    a.kernel(name)
    segs, pvm = G.emit(a, P, pro)
    E = Seg("epi")
    ST(E)
    E("s_nop 7\n s_nop 3")
    for r in range(32): E("v_min_u32 v%d, -2, v%d" % (ACC + 32 + r, ACC + 32 + r))
    for n in range(8):
        q = ACC + 32 + 4 * n
        E("buffer_store_dwordx4 v[%d:%d], v%d, s[%d:%d], s%d offen offset:%d sc1" % (q, q + 3, vL16, sWS, sWS + 3, 38 + (n >> 2), 1024 * (n & 3)))
    E("s_mov_b32 s%d, 20000" % sCNT)
    PL = Seg("poll")
    PL("%s_poll:" % name)
    for n in range(8):
        q = RCV + 4 * n
        PL("buffer_load_dwordx4 v[%d:%d], v%d, s[%d:%d], s%d offen offset:%d sc1" % (q, q + 3, vL16, sWS, sWS + 3, 40 + (n >> 2), 1024 * (n & 3)))
    PL("s_waitcnt vmcnt(0)")
    PL("v_max3_u32 v%d, v%d, v%d, v%d" % (T, RCV, RCV + 1, RCV + 2))
    for r in range(3, 31, 2): PL("v_max3_u32 v%d, v%d, v%d, v%d" % (T, T, RCV + r, RCV + r + 1))
    PL("v_max_u32 v%d, v%d, v%d" % (T, T, RCV + 31))
    PL("v_cmp_eq_u32 vcc, -1, v%d\n s_sub_u32 s%d, s%d, 1\n s_cbranch_vccz %s_got" % (T, sCNT, sCNT, name))
    PL("s_cmp_lg_u32 s%d, 0\n s_cbranch_scc1 %s_poll" % (sCNT, name))
    F = Seg("fin")
    F("%s_got:" % name)
    ST(F)
    if which == 3:
        for n in range(4):
            F("v_permlane32_swap_b32 v%d, v%d\n v_permlane32_swap_b32 v%d, v%d" % (RES + 4 * n, RES + 4 * n + 2, RES + 4 * n + 1, RES + 4 * n + 3))
    for r in range(32): F("v_add_f32 v%d, v%d, v%d" % (ACC + r, ACC + r, RCV + r))
    for d in range(16):
        F("v_lshlrev_b32 v%d, 16, v%d\n v_and_b32 v%d, 0xffff0000, v%d" % (RCV + 2 * d, RES + d, RCV + 2 * d + 1, RES + d))
    for r in range(32): F("v_add_f32 v%d, v%d, v%d" % (ACC + r, ACC + r, RCV + r))
    for d in range(16): F("v_cvt_pk_bf16_f32 v%d, v%d, v%d" % (RES + d, ACC + 2 * d, ACC + 2 * d + 1))
    if which == 3:
        for n in range(4):
            F("buffer_store_dwordx4 v[%d:%d], v%d, s[%d:%d], 0 offen offset:%d" % (RES + 4 * n, RES + 4 * n + 3, vHF, sWS, sWS + 3, 1024 * n))
        for d in range(16):
            F("v_lshlrev_b32 v%d, 16, v%d\n v_and_b32 v%d, 0xffff0000, v%d" % (RCV + 2 * d, RES + d, RCV + 2 * d + 1, RES + d))
        F("v_add_f32 v%d, v%d, v%d\n v_mul_f32 v%d, v%d, v%d\n v_fmac_f32 v%d, v%d, v%d" % (T, RCV, RCV + 1, T + 1, RCV, RCV, T + 1, RCV + 1, RCV + 1))
        for r in range(2, 32):
            F("v_add_f32 v%d, v%d, v%d\n v_fmac_f32 v%d, v%d, v%d" % (T, T, RCV + r, T + 1, RCV + r, RCV + r))
        F("v_mov_b32 v%d, v%d\n v_mov_b32 v%d, v%d\n s_nop 1" % (T + 2, T, T + 3, T + 1))
        F("v_permlane32_swap_b32 v%d, v%d\n v_permlane32_swap_b32 v%d, v%d\n s_nop 0" % (T, T + 2, T + 1, T + 3))
        F("v_add_f32 v%d, v%d, v%d\n v_add_f32 v%d, v%d, v%d" % (T, T, T + 2, T + 1, T + 1, T + 3))
        F("s_lshl_b32 s3, s%d, 1\n s_add_u32 s3, s3, s%d\n s_lshl_b32 s3, s3, 14\n s_lshl_b32 s36, s%d, 8\n s_add_u32 s3, s3, s36\n s_add_u32 s3, s3, %d" % (sFT, sKH, sTB, WS_ST))
        F("v_and_b32 v2, 31, v%d\n v_lshlrev_b32 v2, 3, v2" % vL)
        F("buffer_store_dwordx2 v[%d:%d], v2, s[%d:%d], s3 offen" % (T, T + 1, sWS, sWS + 3))
    else:
        F("s_nop 1")
        for n in range(4):
            F("v_permlane32_swap_b32 v%d, v%d\n v_permlane32_swap_b32 v%d, v%d" % (RES + 4 * n, RES + 4 * n + 2, RES + 4 * n + 1, RES + 4 * n + 3))
        for n in range(4):
            F("buffer_store_dwordx4 v[%d:%d], v%d, s[%d:%d], 0 offen offset:%d" % (RES + 4 * n, RES + 4 * n + 3, vRM, sR, sR + 3, 32 * n))
    ST(F)
    if STAMP_ON[0]: F("s_waitcnt vmcnt(0)")
    ST.flush(F, 2 if which == 3 else 4)
    a.seg(E); a.seg(PL); a.seg(F)
    a("%s:\n s_endpgm" % end)
    check(name, *(segs + [E, PL, PL, F]))
    a.kd(name, 216, 216, 100)
    a.launch(name, 256, 256, LDS)

def gen_k4(a, name="up_kernel"):
    import struct
    nst = 16
    end = name + "_end"
    sW, sWS = 8, 16
    sWV, sTB, sFT, sKW, sKX, sM0W, sCNT = 28, 30, 31, 32, 33, 34, 35
    vL, vL16, vX, vDW, vRW = 1, 8, 9, 12, 20
    ACC = 32; FW = [144, 172]; XR = 200; XD = 8; T = 232
    SB_ = 28672; LCS = 4 * SB_
    ST = Stamps(80)
    G = XWGemm(name, 7, nst, ACC, FW, XR, "v", XD, vX, vDW, 7, vRW, SB_, 448, False, sW, sWS, sKW, sKX, sM0W, sCNT, 64 * 7168)
    P = Seg("pro")
    P("s_cmp_ge_u32 s2, 256\n s_cbranch_scc1 %s" % end)
    ST(P)
    P("s_load_dwordx2 s[4:5], s[0:1], %d\n s_load_dwordx2 s[6:7], s[0:1], %d" % (P_W1, P_WS))
    P("v_and_b32 v%d, 63, v0\n v_lshrrev_b32 v2, 6, v0" % vL)
    P("s_lshr_b32 s3, s2, 3")
    P("v_readfirstlane_b32 s%d, v2" % sWV)
    P("s_lshl_b32 s36, s2, 3\n s_and_b32 s36, s36, 8\n s_and_b32 s37, s3, 7\n s_add_u32 s36, s36, s37")
    P("s_lshl_b32 s%d, s2, 1\n s_and_b32 s%d, s%d, 12\n s_lshr_b32 s3, s3, 3\n s_add_u32 s%d, s%d, s3" % (sFT, sFT, sFT, sFT, sFT))
    P("s_lshl_b32 s%d, s36, 2\n s_add_u32 s%d, s%d, s%d" % (sTB, sTB, sTB, sWV))
    P("v_lshlrev_b32 v%d, 4, v%d" % (vL16, vL))
    P("s_lshl_b32 s3, s%d, 16\n s_add_u32 s3, s3, %d\n v_add_u32 v%d, s3, v%d" % (sTB, WS_HF, vX, vL16))
    P("s_mul_i32 s3, s%d, %d\n s_mul_i32 s36, s%d, 448\n s_add_u32 s3, s3, s36" % (sWV, 16 * 7168, sFT))
    for n in range(7):
        P("v_add_u32 v2, %d, v%d\n v_mul_u32_u24 v3, 2341, v2\n v_lshrrev_b32 v3, 16, v3" % (64 * n, vL))
        P("v_mul_u32_u24 v3, %d, v3\n v_lshl_add_u32 v2, v2, 4, v3" % (7168 - 448))
        P("v_add_u32 v2, s3, v2")
        P("v_subrev_u32 v%d, %d, v2" % (vDW + n, 1024 * (n & 3)))
    P("s_mul_i32 s%d, s%d, 7168\n s_mov_b32 s%d, 0\n s_mov_b32 s%d, 0" % (sM0W, sWV, sKW, sKX))
    P("v_and_b32 v2, 31, v%d\n v_lshlrev_b32 v2, 3, v2\n v_lshrrev_b32 v3, 5, v%d\n v_lshl_add_u32 v10, v3, 14, v2" % (vL, vL))
    P("s_lshl_b32 s3, s%d, 8\n s_add_u32 s3, s3, %d\n v_add_u32 v10, s3, v10" % (sTB, WS_ST))
    P("s_mul_i32 s3, s%d, 896\n s_add_u32 s3, s3, %d\n v_lshlrev_b32 v11, 2, v0\n v_add_u32 v22, s3, v11" % (sFT, WS_CS1))
    P("s_waitcnt lgkmcnt(0)")
    srd(P, sW, 4, 1024 * 7168)
    srd(P, sWS, 6, WS_END)
    pre = []
    for n in range(8):
        pre.append(I("s_mov_b32 s3, %d" % (n * 32768)))
        pre.append(I("buffer_load_dwordx2 v[%d:%d], v10, s[%d:%d], s3 offen" % (ACC + 2 * n, ACC + 2 * n + 1, sWS, sWS + 3)))
    for n in range(4):
        pre.append(I("s_mov_b32 s3, %d" % (n * 3584 * 4)))
        pre.append(I("buffer_load_dword v%d, v22, s[%d:%d], s3 offen" % (ACC + 16 + n, sWS, sWS + 3)))
    P.add(pre)
    pro = G.prologue_vm()
    P.add(pro)
    nvm = len([x for x in pro if x.kind == "vm"])
    P("v_bfe_u32 v2, v%d, 2, 2\n v_lshrrev_b32 v3, 5, v%d\n v_lshl_add_u32 v3, v3, 2, v2\n v_mul_u32_u24 v3, 448, v3" % (vL, vL))
    P("v_bfe_u32 v4, v%d, 4, 1\n v_lshl_add_u32 v3, v4, 5, v3\n v_and_b32 v4, 3, v%d\n v_lshl_add_u32 v%d, v4, 3, v3" % (vL, vL, vRW))
    P("v_add_u32 v%d, %d, v%d" % (vRW + 1, 2 * SB_, vRW))
    P("s_waitcnt vmcnt(%d)" % nvm)
    vMU, vZ, vIR = 23, 24, 25
    for n in range(1, 8):
        P("v_add_f32 v%d, v%d, v%d\n v_add_f32 v%d, v%d, v%d" % (ACC, ACC, ACC + 2 * n, ACC + 1, ACC + 1, ACC + 2 * n + 1))
    P("v_mov_b32 v2, v%d\n v_mov_b32 v3, v%d\n s_nop 1\n v_permlane32_swap_b32 v%d, v2\n v_permlane32_swap_b32 v%d, v3\n s_nop 0" % (ACC, ACC + 1, ACC, ACC + 1))
    P("v_add_f32 v2, v2, v%d\n v_add_f32 v3, v3, v%d" % (ACC, ACC + 1))
    P("v_mul_f32 v2, 0x3a800000, v2\n v_mul_f32 v3, 0x3a800000, v3")
    P("v_fma_f32 v3, -v2, v2, v3\n v_max_f32 v3, 0, v3\n v_add_f32 v3, 0x3727c5ac, v3")
    P("v_sqrt_f32 v%d, v3\n v_rsq_f32 v4, v3\n v_sub_f32 v%d, 0, v2\n v_mul_f32 v%d, 0xbfb8aa3b, v4" % (vIR, vMU, vZ))
    P("v_add_f32 v%d, v%d, v%d\n v_add_f32 v%d, v%d, v%d\n v_add_f32 v%d, v%d, v%d" % (ACC + 16, ACC + 16, ACC + 17, ACC + 18, ACC + 18, ACC + 19, ACC + 16, ACC + 16, ACC + 18))
    P("v_add_u32 v11, %d, v11\n ds_write_b32 v11, v%d" % (LCS, ACC + 16))
    for i in range(112): P("v_mov_b32 v%d, 0" % (ACC + i))
    P("s_waitcnt lgkmcnt(0)")
    ST(P)
    a.kernel(name)
    segs, pvm = G.emit(a, P, pro)
    E = Seg("epi")
    ST(E)
    E("v_lshrrev_b32 v2, 5, v%d\n v_lshlrev_b32 v2, 4, v2\n v_add_u32 v2, %d, v2" % (vL, LCS))
    E("s_mul_i32 s3, s%d, %d\n s_mul_i32 s36, s%d, 14336\n s_add_u32 s3, s3, s36\n s_add_u32 s3, s3, %d" % (sTB, 224 * 1024, sFT, WS_H1))
    CS = 144
    body = []
    def csr(i):
        return [I("ds_read_b128 v[%d:%d], v2 offset:%d" % (CS + 16 * (i & 1) + 4 * g, CS + 16 * (i & 1) + 4 * g + 3, (32 * i + 8 * g) * 4)) for g in range(4)]
    body += csr(0)
    body.append(I("s_nop 7"))
    for i in range(7):
        if i < 6: body += csr(i + 1)
        A = ACC + 16 * i; C = CS + 16 * (i & 1); Z = 176; O = 200 + 8 * (i & 1)
        for r in range(16): body.append(I("v_fmac_f32 v%d, v%d, v%d" % (A + r, vMU, C + r)))
        for r in range(16): body.append(I("v_mul_f32 v%d, v%d, v%d" % (Z + r, vZ, A + r)))
        for r in range(16): body.append(I("v_exp_f32 v%d, v%d" % (Z + r, Z + r)))
        for r in range(16): body.append(I("v_fma_f32 v%d, v%d, v%d, v%d" % (Z + r, Z + r, vIR, vIR)))
        for r in range(16): body.append(I("v_rcp_f32 v%d, v%d" % (Z + r, Z + r)))
        for r in range(16): body.append(I("v_mul_f32 v%d, v%d, v%d" % (A + r, A + r, Z + r)))
        for e in range(8): body.append(I("v_cvt_pk_bf16_f32 v%d, v%d, v%d" % (O + e, A + 2 * e, A + 2 * e + 1)))
        for hf in range(2):
            f = 2 * i + hf
            if f % 4 == 0 and f: body.append(I("s_add_u32 s3, s3, 4096"))
            body.append(I("buffer_store_dwordx4 v[%d:%d], v%d, s[%d:%d], s3 offen offset:%d" % (O + 4 * hf, O + 4 * hf + 3, vL16, sWS, sWS + 3, 1024 * (f & 3))))
    body, _, _ = auto_waits(body, [], [])
    E.add(body)
    ST(E)
    if STAMP_ON[0]: E("s_waitcnt vmcnt(0)")
    ST.flush(E, 3)
    a.seg(E)
    a("%s:\n s_endpgm" % end)
    check(name, *(segs + [E]))
    a.kd(name, 240, 240, 100)
    a.launch(name, 256, 256, LCS + 1024)
```

```python
from common import *

def gen_k1(a, name="kv_kernel"):
    LX = [0, 32768]; LW = [65536, 98304]; LSCR = 131072; LCS = LSCR + 16384
    end = name + "_end"
    sX, sW, sWS, sXI, sW1 = 8, 12, 16, 20, 24
    sWV, sM0X, sM0W, sKX, sKW, sCNT = 28, 29, 30, 31, 32, 33
    sISV, sHP, sTT = 34, 35, 36
    vDX, vDW, vRX, vRW = 8, 16, 24, 28
    vL = 32
    FW = [64, 80]; FX = [96, 112]
    P = Seg("pro")
    P("s_cmp_ge_u32 s2, 256\n s_cbranch_scc1 %s" % end)
    ST = Stamps(); ST(P)
    P("s_load_dwordx4 s[40:43], s[0:1], 0")
    P("s_load_dwordx4 s[44:47], s[0:1], 24")
    P("s_load_dwordx2 s[48:49], s[0:1], %d" % P_W1)
    P("s_load_dwordx2 s[50:51], s[0:1], %d" % P_WS)
    P("v_and_b32 v%d, 63, v0" % vL)
    P("v_lshrrev_b32 v1, 6, v0")
    P("s_and_b32 s3, s2, 7\n s_lshr_b32 s4, s2, 3")
    P("v_readfirstlane_b32 s%d, v1" % sWV)
    P("s_and_b32 s%d, s4, 7" % sTT)
    P("s_lshr_b32 s4, s4, 3")
    P("s_lshr_b32 s%d, s4, 1" % sISV)
    P("s_and_b32 s4, s4, 1\n s_lshl_b32 s3, s3, 1\n s_add_u32 s%d, s3, s4" % sHP)
    P("v_lshrrev_b32 v2, 3, v%d" % vL)
    P("v_lshrrev_b32 v3, 4, v%d" % vL)
    P("v_and_b32 v4, 7, v%d" % vL)
    P("v_xor_b32 v4, v4, v3")
    P("s_lshl_b32 s5, s%d, 8\n s_lshl_b32 s6, s%d, 6\n s_add_u32 s5, s5, s6" % (sTT, sWV))
    P("v_add_u32 v2, s5, v2\n v_lshlrev_b32 v2, 10, v2")
    P("v_lshl_add_u32 v5, v4, 4, v2")
    P("v_xor_b32 v4, 4, v4\n v_lshl_add_u32 v6, v4, 4, v2")
    for n in range(8):
        P("v_add_u32 v%d, %d, v%d" % (vDX + n, 8192 * n - 1024 * (n & 3), 5 + (n & 1)))
    P("v_lshrrev_b32 v2, 5, v%d" % vL)
    P("v_and_b32 v4, 31, v%d" % vL)
    P("v_lshlrev_b32 v3, 2, v2\n v_xor_b32 v4, v4, v3")
    P("s_lshl_b32 s5, s%d, 4\n v_add_u32 v2, s5, v2\n v_lshlrev_b32 v2, 13, v2" % sWV)
    P("s_lshl_b32 s5, s%d, 9\n v_add_u32 v2, s5, v2" % sHP)
    P("v_lshl_add_u32 v5, v4, 4, v2")
    P("v_xor_b32 v4, 8, v4\n v_lshl_add_u32 v6, v4, 4, v2")
    for n in range(8):
        P("v_add_u32 v%d, %d, v%d" % (vDW + n, 16384 * n - 1024 * (n & 3), 5 + (n & 1)))
    P("s_lshl_b32 s5, s2, 3\n s_lshl_b32 s6, s%d, 1\n s_add_u32 s5, s5, s6\n s_lshl_b32 s5, s5, 11" % sWV)
    P("v_lshlrev_b32 v7, 5, v%d\n v_add_u32 v7, s5, v7" % vL)
    P("s_mul_hi_u32 s52, s2, %d" % ((1 << 32) // 56 + 1))
    P("s_mul_i32 s5, s52, 56\n s_sub_u32 s53, s2, s5")
    P("s_lshl_b32 s5, s52, 8\n s_lshl_b32 s6, s%d, 6\n s_add_u32 s5, s5, s6" % sWV)
    P("v_lshrrev_b32 v2, 3, v%d\n v_add_u32 v2, s5, v2\n v_mul_u32_u24 v2, 7168, v2" % vL)
    P("v_and_b32 v3, 7, v%d\n v_lshl_add_u32 v2, v3, 4, v2\n s_lshl_b32 s5, s53, 7\n v_add_u32 v33, s5, v2" % vL)
    P("s_waitcnt lgkmcnt(0)")
    srd(P, sXI, 40, 2048 * 2048)
    srd(P, sX, 42, 2048 * 1024)
    P("s_cmp_eq_u32 s%d, 0\n s_cselect_b32 s44, s44, s46\n s_cselect_b32 s45, s45, s47" % sISV)
    srd(P, sW, 44, 512 * 8192)
    srd(P, sW1, 48, 1024 * 7168)
    srd(P, sWS, 50, WS_END)
    for r in range(2):
        for hh in range(2):
            q = 128 + 8 * r + 4 * hh
            P("buffer_load_dwordx4 v[%d:%d], v7, s[%d:%d], 0 offen offset:%d" % (q, q + 3, sXI, sXI + 3, 2048 * r + 16 * hh))
    for n in range(8):
        P("s_mov_b32 s5, %d" % (n * 8 * 7168))
        P("buffer_load_dwordx4 v[%d:%d], v33, s[%d:%d], s5 offen" % (144 + 4 * n, 147 + 4 * n, sW1, sW1 + 3))
    P("s_lshl_b32 s%d, s%d, 13" % (sM0X, sWV))
    P("s_add_u32 s%d, s%d, %d" % (sM0W, sM0X, LW[0]))
    P("s_mov_b32 s%d, 0\n s_mov_b32 s%d, 0" % (sKX, sKW))

    def dma(b, t):
        g = []
        for (vb, sd, sm0, sk) in ((vDX, sX, sM0X, sKX), (vDW, sW, sM0W, sKW)):
            for n in range(8):
                x = []
                if n % 4 == 0:
                    x.append(I("s_add_u32 m0, s%d, %d" % (sm0, b * 32768 + (n // 4) * 4096)))
                    x.append(I("s_nop 0"))
                x.append(I("buffer_load_dwordx4 v%d, s[%d:%d], s%d offen offset:%d lds" % (vb + n, sd, sd + 3, sk, 1024 * (n & 3)), tag=t))
                g.append(x)
        g.append([I("s_add_u32 s%d, s%d, 128" % (sKX, sKX)), I("s_add_u32 s%d, s%d, %d" % (sKW, sKW, 64 * 8192))])
        return g
    for t in range(2):
        for x in dma(t, t): P.add(x)
    P("v_and_b32 v2, 31, v%d\n v_lshrrev_b32 v3, 5, v%d\n v_bfe_u32 v4, v%d, 1, 3" % (vL, vL, vL))
    P("s_lshr_b32 s5, s%d, 1\n s_lshl_b32 s5, s5, 14" % sWV)
    P("v_lshlrev_b32 v2, 7, v2\n v_add_u32 v2, s5, v2")
    P("v_xor_b32 v3, v3, v4")
    for s in range(4):
        P("v_xor_b32 v5, %d, v3\n v_lshl_add_u32 v%d, v5, 4, v2" % (2 * s, vRX + s))
    P("v_bfe_u32 v2, v%d, 2, 2" % vL)
    P("v_lshrrev_b32 v3, 5, v%d\n v_lshl_add_u32 v3, v3, 3, v2\n v_lshlrev_b32 v3, 9, v3" % vL)
    P("v_bfe_u32 v4, v%d, 4, 1\n v_lshl_add_u32 v3, v4, 5, v3" % vL)
    P("v_and_b32 v4, 3, v%d\n v_lshl_add_u32 v3, v4, 3, v3" % vL)
    P("s_and_b32 s5, s%d, 1\n s_lshl_b32 s5, s5, 8\n s_add_u32 s5, s5, %d\n v_add_u32 v3, s5, v3" % (sWV, LW[0]))
    for i in range(4):
        P("v_xor_b32 v5, %d, v2\n v_lshl_add_u32 v%d, v5, 6, v3" % (i, vRW + i))
    for i in range(256):
        P("v_accvgpr_write_b32 a%d, 0" % i)
    ST(P)
    P("s_waitcnt vmcnt(40)")
    ST(P)
    E = 176
    for r in range(2):
        for d in range(8):
            src = 128 + 8 * r + d
            P("v_lshlrev_b32 v%d, 16, v%d" % (E + 16 * r + 2 * d, src))
            P("v_and_b32 v%d, 0xffff0000, v%d" % (E + 16 * r + 2 * d + 1, src))
    T = 208
    for r in range(2):
        P("v_add_f32 v%d, v%d, v%d" % (T + r, E + 16 * r, E + 16 * r + 1))
        for e in range(2, 16):
            P("v_add_f32 v%d, v%d, v%d" % (T + r, T + r, E + 16 * r + e))
    for r in range(2): wave_allreduce(P, T + r, T + 8)
    for r in range(2):
        P("v_mul_f32 v%d, 0x3a800000, v%d" % (T + r, T + r))
        P("v_sub_f32 v%d, v%d, v%d\n v_mul_f32 v%d, v%d, v%d" % (T + 8, E + 16 * r, T + r, T + 2 + r, T + 8, T + 8))
        for e in range(1, 16):
            P("v_sub_f32 v%d, v%d, v%d\n v_fmac_f32 v%d, v%d, v%d" % (T + 8, E + 16 * r + e, T + r, T + 2 + r, T + 8, T + 8))
    for r in range(2): wave_allreduce(P, T + 2 + r, T + 8)
    def rbf(x):
        P("v_cvt_pk_bf16_f32 v%d, v%d, v%d\n v_lshlrev_b32 v%d, 16, v%d" % (x, x, x, x, x))
    for r in range(2):
        P("v_mul_f32 v%d, 0x3a800000, v%d" % (T + 2 + r, T + 2 + r))
        rbf(T + r); rbf(T + 2 + r)
        P("v_add_f32 v%d, 0x3727c5ac, v%d" % (T + 2 + r, T + 2 + r)); rbf(T + 2 + r)
        P("v_sqrt_f32 v%d, v%d\n s_nop 0" % (T + 2 + r, T + 2 + r)); rbf(T + 2 + r)
        P("v_rcp_f32 v%d, v%d\n s_nop 0" % (T + 2 + r, T + 2 + r))
        for d in range(8):
            e0 = E + 16 * r + 2 * d
            P("v_sub_f32 v%d, v%d, v%d\n v_sub_f32 v%d, v%d, v%d" % (e0, e0, T + r, e0 + 1, e0 + 1, T + r))
            P("v_cvt_pk_bf16_f32 v%d, v%d, v%d" % (T + 8, e0, e0 + 1))
            P("v_lshlrev_b32 v%d, 16, v%d\n v_and_b32 v%d, 0xffff0000, v%d" % (e0, T + 8, e0 + 1, T + 8))
            P("v_mul_f32 v%d, v%d, v%d\n v_mul_f32 v%d, v%d, v%d" % (e0, e0, T + 2 + r, e0 + 1, e0 + 1, T + 2 + r))
            P("v_cvt_pk_bf16_f32 v%d, v%d, v%d" % (128 + 8 * r + d, e0, e0 + 1))
    P("v_and_b32 v2, 7, v%d\n s_lshl_b32 s5, s%d, 1\n v_xor_b32 v2, s5, v2" % (vL, sWV))
    P("v_lshlrev_b32 v3, 8, v%d\n v_add_u32 v3, %d, v3" % (vL, LSCR))
    P("v_lshl_add_u32 v4, v2, 4, v3\n v_xor_b32 v2, 1, v2\n v_lshl_add_u32 v5, v2, 4, v3")
    for r in range(2):
        for hh in range(2):
            q = 128 + 8 * r + 4 * hh
            P("ds_write_b128 v%d, v[%d:%d] offset:%d" % (4 + r, q, q + 3, 128 * hh))
    P("s_waitcnt vmcnt(32)")
    C = 176
    for n in range(8):
        for d in range(4):
            src = 144 + 4 * n + d
            if n == 0:
                P("v_lshlrev_b32 v%d, 16, v%d\n v_and_b32 v%d, 0xffff0000, v%d" % (C + 2 * d, src, C + 2 * d + 1, src))
            else:
                P("v_lshlrev_b32 v%d, 16, v%d\n v_and_b32 v%d, 0xffff0000, v%d" % (T, src, T + 1, src))
                P("v_add_f32 v%d, v%d, v%d\n v_add_f32 v%d, v%d, v%d" % (C + 2 * d, C + 2 * d, T, C + 2 * d + 1, C + 2 * d + 1, T + 1))
    P("s_nop 1")
    for e in range(8):
        P("v_add_f32_dpp v%d, v%d, v%d row_ror:8 row_mask:0xf bank_mask:0xf" % (C + e, C + e, C + e))
    for sw in ("v_permlane16_swap_b32", "v_permlane32_swap_b32"):
        for e in range(8): P("v_mov_b32 v%d, v%d" % (C + 8 + e, C + e))
        P("s_nop 1")
        for e in range(8): P("%s v%d, v%d" % (sw, C + e, C + 8 + e))
        P("s_nop 0")
        for e in range(8): P("v_add_f32 v%d, v%d, v%d" % (C + e, C + e, C + 8 + e))
    P("v_and_b32 v2, 7, v%d\n v_lshlrev_b32 v2, 5, v2\n s_lshl_b32 s5, s%d, 8\n s_add_u32 s5, s5, %d\n v_add_u32 v2, s5, v2" % (vL, sWV, LCS))
    P("ds_write_b128 v2, v[%d:%d]\n ds_write_b128 v2, v[%d:%d] offset:16" % (C, C + 3, C + 4, C + 7))
    P("s_waitcnt lgkmcnt(0)\n s_barrier")
    P("v_lshrrev_b32 v2, 3, v%d\n s_lshl_b32 s5, s%d, 5\n v_add_u32 v2, s5, v2" % (vL, sWV))
    P("v_lshrrev_b32 v3, 4, v%d\n v_and_b32 v4, 7, v%d\n v_xor_b32 v3, v3, v4" % (vL, vL))
    P("v_lshlrev_b32 v5, 7, v2\n v_add_u32 v5, %d, v5" % LSCR)
    P("v_lshl_add_u32 v6, v3, 4, v5\n v_xor_b32 v3, 4, v3\n v_lshl_add_u32 v7, v3, 4, v5")
    for n in range(4):
        P("ds_read_b128 v[%d:%d], v%d offset:%d" % (128 + 4 * n, 131 + 4 * n, 6 + (n & 1), 1024 * n))
    P("v_lshlrev_b32 v34, 2, v%d\n v_add_u32 v35, %d, v34" % (vL, LCS))
    for w in range(4):
        P("ds_read_b32 v%d, v35 offset:%d" % (144 + w, 256 * w))
    P("v_lshrrev_b32 v3, 1, v2\n v_lshlrev_b32 v3, 10, v3\n v_and_b32 v2, 1, v2\n v_lshl_add_u32 v3, v2, 9, v3\n v_lshl_add_u32 v3, v4, 4, v3")
    P("s_lshr_b32 s5, s2, 2\n s_lshl_b32 s5, s5, 16\n s_and_b32 s6, s2, 3\n s_lshl_b32 s6, s6, 7\n s_add_u32 s5, s5, s6\n s_add_u32 s5, s5, %d" % WS_XN)
    P("v_add_u32 v3, s5, v3")
    P("s_waitcnt lgkmcnt(0)")
    for n in range(4):
        P("s_mov_b32 s5, %d" % (4096 * n))
        P("buffer_store_dwordx4 v[%d:%d], v3, s[%d:%d], s5 offen" % (128 + 4 * n, 131 + 4 * n, sWS, sWS + 3))
    P("v_add_f32 v144, v144, v145\n v_add_f32 v146, v146, v147\n v_add_f32 v144, v144, v146")
    P("s_mul_i32 s5, s52, %d\n s_lshl_b32 s6, s53, 8\n s_add_u32 s5, s5, s6\n s_add_u32 s5, s5, %d" % (3584 * 4, WS_CS1))
    P("s_cmp_lt_u32 s2, 224\n s_cselect_b32 s6, 0, 1\n s_add_u32 s6, s6, s%d\n s_cmp_eq_u32 s6, 0\n s_cselect_b32 s5, s5, 0x%x" % (sWV, WS_END))
    P("v_add_u32 v34, s5, v34")
    P("buffer_store_dword v144, v34, s[%d:%d], 0 offen" % (sWS, sWS + 3))
    P("v_mov_b32 v148, -1\n v_mov_b32 v149, -1\n v_mov_b32 v150, -1\n v_mov_b32 v151, -1")
    P("v_lshlrev_b32 v2, 4, v%d\n s_lshl_b32 s5, s2, 16\n s_lshl_b32 s6, s%d, 14\n s_add_u32 s5, s5, s6\n s_add_u32 s5, s5, %d" % (vL, sWV, WS_EX3))
    for n in range(16):
        if n and n % 4 == 0: P("s_add_u32 s5, s5, 4096")
        P("buffer_store_dwordx4 v[148:151], v2, s[%d:%d], s5 offen offset:%d" % (sWS, sWS + 3, 1024 * (n & 3)))
    ST(P)
    P("s_waitcnt vmcnt(37)\n s_barrier")
    ST(P)
    if STAMP_ON[0]: P("s_waitcnt lgkmcnt(0)")

    def reads(b, s, p):
        g = []
        for i in range(4):
            for r2 in range(2):
                q = FW[p] + 4 * i + 2 * r2
                g.append(I("ds_read_b64_tr_b16 v[%d:%d], v%d offset:%d" % (q, q + 1, vRW + i, b * 32768 + (16 * s + 4 * r2) * 512)))
            q = FX[p] + 4 * i
            g.append(I("ds_read_b128 v[%d:%d], v%d offset:%d" % (q, q + 3, vRX + s, b * 32768 + 4096 * i)))
        return g
    def mfmas(p, isv):
        g = []
        order = sorted([(i, j) for i in range(4) for j in range(4)], key=lambda x: (max(x), x))
        for (i, j) in order:
            w = vr(FW[p] + 4 * i, 4); x = vr(FX[p] + 4 * j, 4)
            d = ar(16 * (4 * i + j), 16)
            g.append(mfma32(d, x, w) if isv else mfma32(d, w, x))
        return g
    def stage(b, t, isv, do_dma, do_next):
        S = []
        for s in range(4):
            p = s & 1
            if s < 3:
                f = reads(b, s + 1, p ^ 1)
                S += interleave(mfmas(p, isv), f, per=1)
                if s == 2 and do_next:
                    S.append(I("s_waitcnt vmcnt(0) lgkmcnt(0)"))
                    S.append(I("s_barrier"))
            else:
                f = []
                if do_next: f += reads(b ^ 1, 0, 0)
                if do_dma: f += dma(b, t + 2)
                S += interleave(mfmas(p, isv), f)
        return S
    P.add(reads(0, 0, 0))
    pend0 = [set(x.w) for x in reads(0, 0, 0)]
    a.kernel(name)
    a.seg(P)
    a("s_cmp_eq_u32 s%d, 1\n s_cbranch_scc1 %s_v" % (sISV, name))
    EP = Seg("epi")
    EP("s_nop 7\n s_nop 3")
    ST(EP)
    EP("s_and_b32 s5, s%d, 1\n s_lshl_b32 s6, s%d, 1\n s_add_u32 s5, s5, s6\n s_lshl_b32 s5, s5, 6" % (sWV, sHP))
    EP("s_lshl_b32 s6, s%d, 3\n s_add_u32 s5, s5, s6\n s_lshr_b32 s6, s%d, 1\n s_lshl_b32 s6, s6, 2\n s_add_u32 s5, s5, s6" % (sTT, sWV))
    EP("s_lshl_b32 s5, s5, 13\n s_mul_i32 s6, s%d, %d\n s_add_u32 s5, s5, s6\n s_add_u32 s5, s5, %d" % (sISV, WS_VF - WS_KF, WS_KF))
    EP("v_lshlrev_b32 v2, 4, v%d" % vL)
    k = 0
    for j in range(4):
        for i in range(4):
            for hf in range(2):
                t0 = 128 + (k % 4) * 8; o0 = 160 + (k % 8) * 4
                src = 16 * (4 * i + j) + 8 * hf
                for e in range(8): EP("v_accvgpr_read_b32 v%d, a%d" % (t0 + e, src + e))
                for e in range(4): EP("v_cvt_pk_bf16_f32 v%d, v%d, v%d" % (o0 + e, t0 + 2 * e, t0 + 2 * e + 1))
                off = (2 * i + hf) * 1024
                if off == 0 or off == 4096:
                    EP("s_add_u32 s6, s5, %d" % (j * 8192 + off))
                EP("buffer_store_dwordx4 v[%d:%d], v2, s[%d:%d], s6 offen offset:%d" % (o0, o0 + 3, sWS, sWS + 3, off & 4095))
                k += 1
    ST(EP)
    if STAMP_ON[0]: EP("s_waitcnt vmcnt(0)")
    ST.flush(EP, 0)
    for isv in (0, 1):
        if isv: a("%s_v:" % name)
        lp = "%s_loop%d" % (name, isv)
        body = stage(0, 0, isv, 1, 1) + stage(1, 1, isv, 1, 1)
        body, pend = auto_lgkm(body, pend0)
        assert [sorted(x) for x in pend] == [sorted(x) for x in pend0]
        tail, _ = auto_lgkm(stage(0, 6, isv, 0, 1) + stage(1, 7, isv, 0, 0), pend0)
        a("s_mov_b32 s%d, 3" % sCNT)
        a(lp + ":")
        a.seg(body)
        lt = Seg()("s_sub_u32 s%d, s%d, 1\n s_cmp_lg_u32 s%d, 0\n s_cbranch_scc1 %s" % (sCNT, sCNT, sCNT, lp))
        a.seg(lt)
        a.seg(tail)
        if not isv: a("s_branch %s_epi" % name)
        check(name, P, body, lt, body, lt, tail, EP)
    a("%s_epi:" % name)
    a.seg(EP)
    a("%s:\n s_endpgm" % end)
    a.kd(name, 512, 256, 96)
    a.launch(name, 256, 256, LCS + 1024)

if __name__ == "__main__":
    a = Asm()
    gen_k1(a)
    open("k1.s", "w").write(a.text())
```

```python
from common import *
import math, struct

def f2u(x): return struct.unpack("<I", struct.pack("<f", x))[0]
QSCALE = f2u(math.log2(math.e) / math.sqrt(128.0))
THR = f2u(2.0 ** 20)

DBG = set()
def gen_k2(a, name="attn_kernel"):
    end = name + "_end"
    sWQ, sWS = 8, 16
    sWV, sHEAD, sI, sNA, sNB, sTRIA, sTRIB, sK1 = 28, 29, 30, 31, 32, 33, 34, 35
    sSLOT, sDSL, sSRC, sSRCMAX, sCNT, sTHR, sKW, sKX, sM0W, sWOFF = 36, 37, 38, 39, 40, 41, 42, 43, 44, 45
    sMASK = 48
    sTH2, sNEG = 26, 27
    vL, vL16, vRD, vNINF = 1, 8, 9, 10
    vL16B, vL16M, vC16 = 24, 25, 26
    vXA, vDW, vRW = 12, 16, 20
    SB = [[32, 48], [64, 80]]; NEGM = [96, 112]; PB = [[128, 136], [144, 152]]; TMP = 160; LR = [[176, 177], [178, 179]]
    vT = 180
    QR = [192, 224]
    ACC = 32; FW = [160, 176]; XR = 192
    OA = [0, 64]; KFR = 192; VFR = 224
    LWQ = 98304
    ST = Stamps(80)

    P = Seg("pro")
    P("s_cmp_ge_u32 s2, 256\n s_cbranch_scc1 %s" % end)
    ST(P)
    P("s_load_dwordx2 s[4:5], s[0:1], %d\n s_load_dwordx2 s[6:7], s[0:1], %d" % (P_WQ, P_WS))
    P("v_and_b32 v%d, 63, v0\n v_lshrrev_b32 v2, 6, v0" % vL)
    P("s_and_b32 s3, s2, 7\n s_lshr_b32 s%d, s2, 3" % sI)
    P("v_readfirstlane_b32 s%d, v2" % sWV)
    P("s_lshr_b32 s%d, s%d, 3\n s_lshl_b32 s3, s3, 2\n s_add_u32 s%d, s%d, s3\n s_and_b32 s%d, s%d, 7" % (sHEAD, sI, sHEAD, sHEAD, sI, sI))
    P("s_lshl_b32 s3, s%d, 2\n s_add_u32 s%d, s3, 4\n s_sub_u32 s%d, 64, s3" % (sI, sNA, sNB))
    P("s_add_u32 s%d, s3, s%d" % (sTRIA, sWV))
    P("s_sub_u32 s%d, s%d, 4\n s_add_u32 s%d, s%d, s%d" % (sTRIB, sNB, sTRIB, sTRIB, sWV))
    P("v_lshlrev_b32 v%d, 4, v%d" % (vL16, vL))
    P("s_lshl_b32 s3, s%d, 16\n s_add_u32 s3, s3, %d\n v_add_u32 v%d, s3, v%d" % (sTRIA, WS_XN, vXA, vL16))
    P("s_lshl_b32 s3, s%d, 16\n s_add_u32 s3, s3, %d\n v_add_u32 v%d, s3, v%d" % (sTRIB, WS_XN, vXA + 1, vL16))
    P("v_lshrrev_b32 v2, 4, v%d\n v_and_b32 v3, 15, v%d\n v_lshlrev_b32 v4, 2, v2\n v_xor_b32 v3, v3, v4" % (vL, vL))
    P("s_lshl_b32 s3, s%d, 4\n v_add_u32 v2, s3, v2\n v_lshlrev_b32 v2, 13, v2\n v_lshl_add_u32 v2, v3, 4, v2" % sWV)
    P("s_lshl_b32 s3, s%d, 8\n v_add_u32 v2, s3, v2" % sHEAD)
    for n in range(4):
        P("v_add_u32 v%d, %d, v2" % (vDW + n, 4 * 8192 * n - 1024 * n))
    P("s_lshl_b32 s%d, s%d, 12\n s_add_u32 s%d, s%d, %d" % (sM0W, sWV, sM0W, sM0W, LWQ))
    P("s_mov_b32 s%d, 0\n s_mov_b32 s%d, 0" % (sKW, sKX))
    P("s_waitcnt lgkmcnt(0)")
    srd(P, sWQ, 4, 1024 * 8192)
    srd(P, sWS, 6, WS_END)

    def dmaW(b, t):
        g = []
        for n in range(4):
            x = []
            if n == 0:
                x += [I("s_add_u32 m0, s%d, %d" % (sM0W, b * 16384)), I("s_nop 0")]
            x.append(I("buffer_load_dwordx4 v%d, s[%d:%d], s%d offen offset:%d lds" % (vDW + n, sWQ, sWQ + 3, sKW, 1024 * n), tag=t))
            if n == 3: x.append(I("s_add_u32 s%d, s%d, %d" % (sKW, sKW, 64 * 8192)))
            g.append(x)
        return g
    def xload(t, s):
        g = []
        for b in range(2):
            q = XR + 8 * (4 * (t & 1) + s) + 4 * b
            x = [I("buffer_load_dwordx4 a[%d:%d], v%d, s[%d:%d], s%d offen offset:%d" % (q, q + 3, vXA + b, sWS, sWS + 3, sKX, 1024 * s))]
            if b == 1: x[0].also = regs_of(ar(q - 4, 4))
            if s == 3 and b == 1: x.append(I("s_add_u32 s%d, s%d, 4096" % (sKX, sKX)))
            g.append(x)
        return g
    def flat(g):
        o = []
        for x in g: o += x if isinstance(x, list) else [x]
        return o
    pro_vm = []
    pro_vm += dmaW(0, 0)
    for t in (0, 1):
        for s in range(3): pro_vm += xload(t, s)
        pro_vm += dmaW(t + 1, t + 1)
        pro_vm += xload(t, 3)
    P.add(flat(pro_vm))
    P("v_bfe_u32 v2, v%d, 2, 2" % vL)
    P("v_lshrrev_b32 v3, 5, v%d\n v_lshl_add_u32 v3, v3, 3, v2\n v_lshlrev_b32 v3, 8, v3" % vL)
    P("v_bfe_u32 v4, v%d, 4, 1\n v_lshl_add_u32 v3, v4, 5, v3" % vL)
    P("v_and_b32 v4, 3, v%d\n v_lshl_add_u32 v3, v4, 3, v3\n v_add_u32 v3, %d, v3" % (vL, LWQ))
    for i in range(4):
        P("v_xor_b32 v5, %d, v2\n v_lshl_add_u32 v%d, v5, 6, v3" % (i, vRW + i))
    for i in range(128): P("v_mov_b32 v%d, 0" % (ACC + i))
    for i in range(128): P("v_accvgpr_write_b32 a%d, 0" % i)
    P("v_and_b32 v2, 31, v%d\n v_lshrrev_b32 v3, 5, v%d\n v_lshlrev_b32 v3, 2, v3\n v_sub_u32 v2, v2, v3" % (vL, vL))
    for r in range(16):
        P("v_cmp_gt_i32 s[%d:%d], %d, v2" % (sMASK + 2 * r, sMASK + 2 * r + 1, 8 * (r >> 2) + (r & 3)))
    P("v_mov_b32 v%d, 0xff800000\n s_mov_b32 s%d, 0x%x\n s_mov_b32 s%d, 0xbf800000" % (vNINF, sTHR, THR, sNEG))
    P("s_lshl_b32 s%d, s%d, 13" % (sWOFF, sWV))
    P("s_lshl_b32 s3, s%d, 19" % sHEAD)
    P("s_mov_b32 s4, %d\n s_cmp_lt_u32 s%d, 2\n s_cselect_b32 s4, %d, s4" % (WS_VF - 2 * 8192, sWV, WS_KF + 3 * 8192))
    P("s_add_u32 s%d, s3, s4\n s_add_u32 s%d, s%d, s%d" % (sSRC, sSRC, sSRC, sWOFF))
    P("s_lshl_b32 s4, s%d, 13\n s_sub_u32 s4, s4, 16384\n s_add_u32 s%d, s%d, s4" % (sNB, sSRCMAX, sSRC))
    P("s_add_u32 s46, s3, %d\n s_add_u32 s46, s46, s%d" % (WS_KF, sWOFF))
    P("s_mov_b32 s47, 65536\n s_cmp_eq_u32 s%d, 0\n s_cselect_b32 s47, 73728, s47\n s_cmp_eq_u32 s%d, 1\n s_cselect_b32 s47, 98304, s47\n s_cmp_eq_u32 s%d, 2\n s_cselect_b32 s47, 106496, s47" % (sWV, sWV, sWV))
    P("s_mov_b32 s%d, s%d" % (sDSL, sWOFF))
    P("v_add_u32 v%d, 4096, v%d\n v_subrev_u32 v%d, s%d, v%d\n v_mov_b32 v%d, 0x10000" % (vL16B, vL16, vL16M, sWOFF, vL16, vC16))
    ST(P)

    def dmaKV(src, dst, tag, adv):
        g = []
        for n in range(8):
            x = []
            if n == 0: x += [I("s_mov_b32 m0, s%d" % dst), I("s_nop 0")]
            if n == 4: x += [I("s_add_u32 m0, s%d, 4096" % dst), I("s_add_u32 s3, s%d, 4096" % src)]
            x.append(I("buffer_load_dwordx4 v%d, s[%d:%d], s%d offen offset:%d lds" % (vL16, sWS, sWS + 3, src if n < 4 else 3, 1024 * (n & 3)), tag=tag))
            if n == 7 and adv:
                x += [I("s_add_u32 s%d, s%d, 16384" % (sSRC, sSRC)), I("s_min_u32 s%d, s%d, s%d" % (sSRC, sSRC, sSRCMAX)),
                      I("s_add_u32 s%d, s%d, 32768" % (sDSL, sDSL)), I("s_and_b32 s%d, s%d, 0x1ffff" % (sDSL, sDSL))]
            g.append(x)
        return g
    def wreads(b, s, p):
        g = []
        for i in range(4):
            for r2 in range(2):
                q = FW[p] + 4 * i + 2 * r2
                g.append(I("ds_read_b64_tr_b16 v[%d:%d], v%d offset:%d" % (q, q + 1, vRW + i, b * 16384 + (16 * s + 4 * r2) * 256)))
        return group(g, 4)
    def qstage(t, last_iter):
        S = []
        for s in range(4):
            p = s & 1
            m = []
            for i in range(4):
                for b in range(2):
                    q = XR + 8 * (4 * (t & 1) + s) + 4 * b
                    m.append(mfma32(vr(ACC + 16 * (2 * i + b), 16), vr(FW[p] + 4 * i, 4), ar(q, 4)))
            f = []
            if s < 3: f += wreads(t & 3, s + 1, p ^ 1)
            elif t < 15: f += wreads((t + 1) & 3, 0, 0)
            ex = []
            if s == 3:
                if t + 3 < 16: ex += dmaW((t + 3) & 3, t + 3)
                elif t == 13: ex += dmaKV(46, 47, 100, False)
                elif t in (14, 15): ex += dmaKV(sSRC, sDSL, 101 + t - 14, True)
            S += weave(m, merge(f, ex) if ex else f, endgap=1)
            if t + 2 < 16: S += flat(xload(t + 2, s))
            if s == 2 and t < 15:
                S.append(WaitTag(t + 1)); S.append(I("s_barrier"))
        return S
    plg = []; pvm = [(set(x.w) | set(getattr(x, "also", ())), x.tag) for x in flat(pro_vm) if x.kind == "vm"]
    first, plg, pvm = auto_waits([WaitTag(0), I("s_barrier")] + wreads(0, 0, 0), plg, pvm)
    P.add(first)
    ST(P)
    if STAMP_ON[0]:
        P("s_waitcnt lgkmcnt(0)"); plg = []
    raw = lambda: qstage(0, False) + qstage(1, False) + qstage(2, False) + qstage(3, False)
    b1, plg1, pvm1 = auto_waits(raw(), plg, pvm)
    pvm1 = shift_tags(pvm1, 4)
    qbody, plg2, pvm2 = auto_waits(raw(), plg1, pvm1)
    if not STAMP_ON[0]:
        assert [x.text for x in b1] == [x.text for x in qbody]
    pvm2 = shift_tags(pvm2, 4 - 12)
    qlt = Seg()("s_sub_u32 s%d, s%d, 1\n s_cmp_lg_u32 s%d, 0\n s_cbranch_scc1 %s_qloop" % (sCNT, sCNT, sCNT, name))
    qtail, plg3, pvm3 = auto_waits(qstage(12, True) + qstage(13, True) + qstage(14, True) + qstage(15, True), plg2, pvm2)

    A0 = Seg("aprol")
    ST(A0)
    A0("s_mov_b32 s4, 0x%x\n s_nop 7" % QSCALE)
    for i in range(4):
        for b in range(2):
            base = ACC + 16 * (2 * i + b)
            for e in range(16): A0("v_mul_f32 v%d, s4, v%d" % (base + e, base + e))
            for e in range(8): A0("v_cvt_pk_bf16_f32 v%d, v%d, v%d" % (QR[b] + 8 * i + e, base + 2 * e, base + 2 * e + 1))
    def kreads(off, vaddr=vRD):
        return group([I("ds_read_b128 a[%d:%d], v%d offset:%d" % (KFR + 4 * s, KFR + 4 * s + 3, vaddr, off + 1024 * s)) for s in range(8)], 4)
    def vreads(off):
        return group([I("ds_read_b128 a[%d:%d], v%d offset:%d" % (VFR + 4 * f, VFR + 4 * f + 3, vRD, off + 1024 * f)) for f in (0, 2, 4, 6, 1, 3, 5, 7)], 4)
    def qk(par, tiles, czero=False):
        m = []
        for s in range(8):
            for b in tiles:
                d = vr(SB[par][b], 16)
                c = None if s else ("0" if czero else vr(NEGM[b], 16))
                m.append(mfma32(d, ar(KFR + 4 * s, 4), vr(QR[b] + 4 * s, 4), c))
        return m
    def pv(par, tiles):
        m = []
        for ks in range(2):
            for dt in range(4):
                for b in tiles:
                    m.append(mfma32(ar(OA[b] + 16 * dt, 16), ar(VFR + 4 * (2 * dt + ks), 4), vr(PB[par][b] + 4 * ks, 4)))
        return m
    def softmax(par, tiles, zero_l=False):
        seq = []
        steps = [(b, e) for e in range(8) for b in tiles]
        def fin(idx):
            b, e = steps[idx]
            t0 = TMP + 2 * (idx % 8)
            lo = LR[par ^ 1][b]; ln = LR[par][b]
            o = []
            if e == 0 and zero_l:
                o.append(I("v_add_f32 v%d, v%d, v%d" % (ln, t0, t0 + 1)))
            else:
                o.append(I("v_add_f32 v%d, v%d, v%d" % (ln, lo if e == 0 else ln, t0)))
                o.append(I("v_cvt_pk_bf16_f32 v%d, v%d, v%d" % (PB[par][b] + e, t0, t0 + 1)))
                o.append(I("v_add_f32 v%d, v%d, v%d" % (ln, ln, t0 + 1)))
                return o
            o.append(I("v_cvt_pk_bf16_f32 v%d, v%d, v%d" % (PB[par][b] + e, t0, t0 + 1)))
            return o
        for idx, (b, e) in enumerate(steps):
            t0 = TMP + 2 * (idx % 8)
            ex = [I("v_exp_f32 v%d, v%d" % (t0, SB[par][b] + 2 * e)), I("v_exp_f32 v%d, v%d" % (t0 + 1, SB[par][b] + 2 * e + 1))]
            fn = fin(idx - 1) if idx else []
            seq.append(ex[0]); seq += fn[:1]; seq.append(ex[1]); seq += fn[1:]
        fn = fin(len(steps) - 1)
        if len(fn) == 2: seq.append(I("s_nop 0"))
        seq += fn
        return seq
    ool = Seg("ool")
    def maskbody(par, tiles, lab):
        for b in tiles:
            tri = (sTRIA, sTRIB)[b]
            l1 = "%s_n%d" % (lab, b); l2 = "%s_f%d" % (lab, b)
            ool("s_cmp_lt_u32 s%d, s%d\n s_cbranch_scc1 %s" % (sK1, tri, l1))
            ool("s_cmp_gt_u32 s%d, s%d\n s_cbranch_scc1 %s" % (sK1, tri, l2))
            for r in range(16):
                ool("v_cndmask_b32 v%d, v%d, v%d, s[%d:%d]" % (SB[par][b] + r, SB[par][b] + r, vNINF, sMASK + 2 * r, sMASK + 2 * r + 1))
            ool("s_branch %s\n%s:" % (l1, l2))
            for r in range(16): ool("v_mov_b32 v%d, v%d" % (SB[par][b] + r, vNINF))
            ool("%s:" % l1)
    def maskfix(S, par, tiles, tag):
        lab = "%s_mf%s" % (name, tag)
        S("s_cmp_ge_u32 s%d, s%d\n s_cbranch_scc1 %s\n%s_ret:" % (sK1, sTRIA if 0 in tiles else sTRIB, lab, lab))
        ool("%s:" % lab)
        maskbody(par, tiles, lab)
        ool("s_branch %s_ret" % lab)
    def rowmax(S, base, dst, tmp):
        S("v_max3_f32 v%d, v%d, v%d, v%d" % (dst, base, base + 1, base + 2))
        for e in range(3, 15, 2):
            S("v_max3_f32 v%d, v%d, v%d, v%d" % (dst, dst, base + e, base + e + 1))
        S("v_max_f32 v%d, v%d, v%d" % (dst, dst, base + 15))
        S("v_mov_b32 v%d, v%d\n s_nop 1\n v_permlane32_swap_b32 v%d, v%d\n s_nop 0\n v_max_f32 v%d, v%d, v%d" % (tmp, dst, dst, tmp, dst, dst, tmp))
    pa = []
    pa += [WaitTag(100), I("s_barrier"), I("v_add_u32 v%d, 65536, v%d" % (vRD, vL16))]
    pa += kreads(8192)
    pa += qk(0, [0, 1], czero=True)
    pa += kreads(32768)
    pa, plg4, pvm4 = auto_waits(pa, plg3, pvm3)
    A0.add(pa)
    A0("s_mov_b32 s%d, 0\n s_nop 3" % sK1)
    maskfix(A0, 0, [0], "p")
    for b in range(2):
        rowmax(A0, SB[0][b], vT, vT + 1)
        for r in range(16): A0("v_sub_f32 v%d, 0, v%d" % (NEGM[b] + r, vT))
        for r in range(16): A0("v_sub_f32 v%d, v%d, v%d" % (SB[0][b] + r, SB[0][b] + r, vT))
    A0("s_nop 1")
    pb = weave(qk(1, [0, 1]), softmax(0, [0, 1], zero_l=True)) + kreads(32768 + 8192)
    pb += [I("v_mov_b32 v%d, v%d" % (vRD, vL16)), I("s_mov_b32 s%d, 1" % sK1), I("s_nop 1"), WaitRegs(regs_of(ar(KFR, 4)))]
    pb, plg5, _ = auto_waits(pb, plg4, [])
    A0.add(pb)
    maskfix(A0, 1, [0], "q")
    ST(A0)
    kpend = plg5
    if STAMP_ON[0]: A0("s_waitcnt lgkmcnt(0)")

    def handler(par, tiles, tag):
        lab = "%s_h%s" % (name, tag)
        ool("%s:" % lab)
        if len(tiles) == 2:
            ool("v_cmp_lt_f32 vcc, s%d, v%d" % (sTHR, vT))
        else:
            ool("v_cmp_lt_f32 vcc, s%d, v%d" % (sTHR, LR[par][tiles[0]]))
        ool("s_cbranch_vccz %s_m" % lab)
        ool("s_nop 15")
        for b in tiles:
            rowmax(ool, SB[par][b], vT, vT + 1)
            ool("v_max_f32 v%d, 0, v%d" % (vT, vT))
            for base in (SB[par][b], SB[par ^ 1][b], NEGM[b]):
                for r in range(16): ool("v_sub_f32 v%d, v%d, v%d" % (base + r, base + r, vT))
            ool("v_sub_f32 v%d, 0, v%d\n v_exp_f32 v%d, v%d\n s_nop 0" % (vT, vT, vT, vT))
            ool("v_mul_f32 v%d, v%d, v%d" % (LR[par ^ 1][b], LR[par ^ 1][b], vT))
            for r in range(0, 64, 4):
                for e in range(4): ool("v_accvgpr_read_b32 v%d, a%d" % (TMP + e, OA[b] + r + e))
                for e in range(4): ool("v_mul_f32 v%d, v%d, v%d" % (TMP + e, TMP + e, vT))
                for e in range(4): ool("v_accvgpr_write_b32 a%d, v%d" % (OA[b] + r + e, TMP + e))
            ool.add(softmax(par, [b]))
        ool("%s_m:" % lab)
        maskbody(par ^ 1, tiles, lab)
        ool("s_nop 1\n s_branch %s_ret" % lab)
        return lab
    def window(par, tiles, tag):
        sm = softmax(par ^ 1, tiles)
        m = qk(par, tiles) + pv(par, tiles)
        n = len(m); h = n // 2; st = h // 8
        pre = {}; mem = {}; post = {}
        def add(d, g, x): d.setdefault(g, []).extend(x if isinstance(x, list) else [x])
        vr_ = vreads(16384 + 8192 * par); kr_ = kreads(8192 * par)
        if "noread" in DBG: vr_ = []; kr_ = []
        if "nosm" in DBG: sm = sm[-3:]
        for j, x in enumerate(vr_): add(mem, j * st, x)
        for j, x in enumerate(kr_): add(mem, h + j * st, x)
        add(pre, 4 * st - 1, WaitRegs(regs_of(ar(KFR + 16, 16))))
        add(pre, h - 1, WaitRegs(regs_of(ar(VFR, 4))))
        add(pre, h + 4 * st - 1, WaitRegs(regs_of(ar(VFR + 4, 4))))
        add(pre, n - 1, WaitRegs(regs_of(ar(KFR, 4))))
        sc = {}
        if par == 0:
            if "nobar" not in DBG: sc[0] = [I("s_waitcnt vmcnt(8)"), I("s_barrier")]
            sc[1] = I("s_mov_b32 m0, s%d" % sDSL)
            dslots = (1, 5, 9, 13)
        else:
            sc[1] = I("s_add_u32 m0, s%d, 4096" % sDSL)
            dslots = (1, 4, 6, 9)
            sc[10] = I("s_add_u32 s%d, s%d, 16384" % (sSRC, sSRC))
            sc[12] = I("s_min_u32 s%d, s%d, s%d" % (sSRC, sSRC, sSRCMAX))
            sc[13] = I("s_add_u32 s%d, s%d, 32768" % (sDSL, sDSL))
            sc[14] = I("s_and_b32 s%d, s%d, 0x1ffff" % (sDSL, sDSL))
        sc[2] = I("s_add_u32 s%d, s%d, 1" % (sK1, sK1))
        sc[4] = I("s_cmp_ge_u32 s%d, s%d" % (sK1, sTRIA if 0 in tiles else sTRIB))
        sc[5] = I("s_cselect_b32 s%d, s%d, s%d" % (sTH2, sNEG, sTHR))
        for k_, x in sc.items(): add(pre, k_ * st, x)
        if "nodma" not in DBG:
            for j, g in enumerate(dslots):
                add(mem, g * st, I("buffer_load_dwordx4 v%d, s[%d:%d], s%d offen offset:%d lds" % (vL16 if par == 0 else vL16B, sWS, sWS + 3, sSRC, 1024 * j)))
        lab = handler(par ^ 1, tiles, tag)
        if len(tiles) == 2:
            sm = sm + [I("v_max_f32 v%d, v%d, v%d" % (vT, LR[par ^ 1][0], LR[par ^ 1][1])), I("v_cmp_lt_f32 vcc, s%d, v%d" % (sTH2, vT))]
        else:
            sm = sm + [I("v_cmp_lt_f32 vcc, s%d, v%d" % (sTH2, LR[par ^ 1][tiles[0]]))]
        tail = []
        if par == 1: tail.append(I("v_xad_u32 v%d, s%d, v%d, v%d" % (vRD, sDSL, vC16, vL16M)))
        body = gaps_schedule(m[:-1], pre, mem, sm)
        body += [m[-1]] + pre.get(n - 1, []) + mem.get(n - 1, []) + tail + [I("s_cbranch_vccnz %s" % lab), I("%s_ret:" % lab)]
        return body
    def loop(tiles, tag):
        body = window(0, tiles, tag + "0") + window(1, tiles, tag + "1")
        body, pl, _ = auto_waits(body, kpend, [])
        assert DBG or [sorted(x) for x in pl] == [sorted(x) for x in kpend][-len(pl):]
        return body
    dual = loop([0, 1], "d"); solo = loop([1], "s")
    def epi(b, tri):
        S = Seg()
        l = LR[0][b]
        S("s_nop 7\n v_mov_b32 v%d, v%d\n s_nop 1\n v_permlane32_swap_b32 v%d, v%d\n s_nop 0\n v_add_f32 v%d, v%d, v%d" % (vT, l, l, vT, l, l, vT))
        S("v_rcp_f32 v%d, v%d" % (l, l))
        S("s_lshl_b32 s4, s%d, 18\n s_lshl_b32 s5, s%d, 13\n s_add_u32 s4, s4, s5\n s_add_u32 s4, s4, %d\n s_add_u32 s5, s4, 4096" % (tri, sHEAD, WS_CTX))
        for f in range(8):
            t0 = SB[f & 1][0]; o0 = PB[(f >> 1) & 1][0] + 4 * (f & 1)
            for e in range(8): S("v_accvgpr_read_b32 v%d, a%d" % (t0 + e, OA[b] + 8 * f + e))
            for e in range(8): S("v_mul_f32 v%d, v%d, v%d" % (t0 + e, t0 + e, l))
            for e in range(4): S("v_cvt_pk_bf16_f32 v%d, v%d, v%d" % (o0 + e, t0 + 2 * e, t0 + 2 * e + 1))
            S("buffer_store_dwordx4 v[%d:%d], v%d, s[%d:%d], s%d offen offset:%d" % (o0, o0 + 3, vL16, sWS, sWS + 3, 4 + (f >> 2), 1024 * (f & 3)))
        return S
    EA = epi(0, sTRIA); EB = epi(1, sTRIB)
    dl = Seg()("s_cmp_le_u32 s%d, s%d\n s_cbranch_scc1 %s_dloop" % (sK1, sNA, name))
    sl = Seg()("s_cmp_le_u32 s%d, s%d\n s_cbranch_scc1 %s_sloop" % (sK1, sNB, name))
    FIN = Seg()
    ST(EA)
    ST(FIN)
    if STAMP_ON[0]: FIN("s_waitcnt vmcnt(0)")
    ST.flush(FIN, 1)

    a.kernel(name)
    a.seg(P)
    a("s_mov_b32 s%d, 3\n%s_qloop:" % (sCNT, name))
    a.seg(qbody); a.seg(qlt); a.seg(qtail); a.seg(A0)
    a("%s_dloop:" % name); a.seg(dual); a.seg(dl)
    a.seg(EA)
    a("%s_sloop:" % name); a.seg(solo); a.seg(sl)
    a.seg(EB); a.seg(FIN)
    a("%s:\n s_endpgm" % end)
    a.seg(ool)
    if not DBG: check(name, P, qbody, qlt, qbody, qlt, qtail, A0, dual, dl, dual, dl, EA, solo, sl, solo, sl, EB, FIN)
    check(name + "_ool", ool)
    a.kd(name, 512, 256, 100)
    a.launch(name, 256, 256, 163840)

if __name__ == "__main__":
    a = Asm()
    gen_k2(a)
    open("k2.s", "w").write(a.text())
```

```python
import sys
from common import *
import k1, k2, gemm
HDR = open("sequential_preLN__compressed_kv_cla__dense_activation_silu__prompt.s.ref").read().split("; Override launch")[0] if False else ""
def gen_all():
    a = Asm()
    k1.gen_k1(a); k2.gen_k2(a); gemm.gen_k35(a, 3); gemm.gen_k4(a); gemm.gen_k35(a, 5)
    return a
HEADER = """; pre-LN MLA-style attention block + SiLU FFN, gfx950.  Generated by my own scripts (dev/*.py).
"""
if __name__ == "__main__":
    out = sys.argv[1] if len(sys.argv) > 1 else "sequential_preLN__compressed_kv_cla__dense_activation_silu__prompt.s"
    open(out, "w").write(gen_all().text(HEADER))
```

```python
from common import *

NT = ""
def gen_k1(a, name="kv_kernel"):
    LX = [0, 32768]; LW = [65536, 98304]; LSCR = 131072; LCS = LSCR + 16384
    end = name + "_end"
    sX, sW, sWS, sXI, sW1 = 8, 12, 16, 20, 24
    sWV, sM0X, sM0W, sKX, sKW, sCNT = 28, 29, 30, 31, 32, 33
    sISV, sHP, sTT = 34, 35, 36
    sPF, sWQ = 60, 64
    vDX, vDW, vRX, vRW = 8, 16, 24, 28
    vL = 32
    FW = [64, 80]; FX = [96, 112]
    P = Seg("pro")
    P("s_cmp_ge_u32 s2, 256\n s_cbranch_scc1 %s" % end)
    ST = Stamps(80); ST(P)
    P("s_load_dwordx4 s[40:43], s[0:1], 0")
    P("s_load_dwordx4 s[44:47], s[0:1], 24")
    P("s_load_dwordx2 s[48:49], s[0:1], %d" % P_W1)
    P("s_load_dwordx2 s[50:51], s[0:1], %d" % P_WS)
    P("s_load_dwordx2 s[56:57], s[0:1], %d" % P_WQ)
    P("v_and_b32 v%d, 63, v0" % vL)
    P("v_lshrrev_b32 v1, 6, v0")
    P("s_and_b32 s3, s2, 7\n s_lshr_b32 s4, s2, 3")
    P("v_readfirstlane_b32 s%d, v1" % sWV)
    P("s_and_b32 s%d, s4, 7" % sTT)
    P("s_lshr_b32 s4, s4, 3")
    P("s_lshr_b32 s%d, s4, 1" % sISV)
    P("s_and_b32 s4, s4, 1\n s_lshl_b32 s3, s3, 1\n s_add_u32 s%d, s3, s4" % sHP)
    P("v_lshrrev_b32 v2, 3, v%d" % vL)
    P("v_lshrrev_b32 v3, 4, v%d" % vL)
    P("v_and_b32 v4, 7, v%d" % vL)
    P("v_xor_b32 v4, v4, v3")
    P("s_lshl_b32 s5, s%d, 8\n s_lshl_b32 s6, s%d, 6\n s_add_u32 s5, s5, s6" % (sTT, sWV))
    P("v_add_u32 v2, s5, v2\n v_lshlrev_b32 v2, 10, v2")
    P("v_lshl_add_u32 v5, v4, 4, v2")
    P("v_xor_b32 v4, 4, v4\n v_lshl_add_u32 v6, v4, 4, v2")
    for n in range(8):
        P("v_add_u32 v%d, %d, v%d" % (vDX + n, 8192 * n - 1024 * (n & 3), 5 + (n & 1)))
    P("v_lshrrev_b32 v2, 5, v%d" % vL)
    P("v_and_b32 v4, 31, v%d" % vL)
    P("v_lshlrev_b32 v3, 2, v2\n v_xor_b32 v4, v4, v3")
    P("s_lshl_b32 s5, s%d, 4\n v_add_u32 v2, s5, v2\n v_lshlrev_b32 v2, 13, v2" % sWV)
    P("s_lshl_b32 s5, s%d, 9\n v_add_u32 v2, s5, v2" % sHP)
    P("v_lshl_add_u32 v5, v4, 4, v2")
    P("v_xor_b32 v4, 8, v4\n v_lshl_add_u32 v6, v4, 4, v2")
    for n in range(8):
        P("v_add_u32 v%d, %d, v%d" % (vDW + n, 16384 * n - 1024 * (n & 3), 5 + (n & 1)))
    P("s_lshl_b32 s5, s2, 3\n s_lshl_b32 s6, s%d, 1\n s_add_u32 s5, s5, s6\n s_lshl_b32 s5, s5, 11" % sWV)
    P("v_lshlrev_b32 v7, 5, v%d\n v_add_u32 v7, s5, v7" % vL)
    P("s_mul_hi_u32 s52, s2, %d" % ((1 << 32) // 56 + 1))
    P("s_mul_i32 s5, s52, 56\n s_sub_u32 s53, s2, s5")
    P("s_lshl_b32 s5, s52, 8\n s_lshl_b32 s6, s%d, 6\n s_add_u32 s5, s5, s6" % sWV)
    P("v_lshrrev_b32 v2, 3, v%d\n v_add_u32 v2, s5, v2\n v_mul_u32_u24 v2, 7168, v2" % vL)
    P("v_and_b32 v3, 7, v%d\n v_lshl_add_u32 v2, v3, 4, v2\n s_lshl_b32 s5, s53, 7\n v_add_u32 v33, s5, v2" % vL)
    P("s_lshr_b32 s4, s2, 3\n s_lshl_b32 s5, s4, 16\n s_lshl_b32 s6, s%d, 7\n s_add_u32 s5, s5, s6\n v_lshlrev_b32 v39, 10, v%d\n v_add_u32 v39, s5, v39" % (sWV, vL))
    P("v_lshrrev_b32 v2, 4, v%d\n v_lshlrev_b32 v2, 6, v2\n v_bfe_u32 v3, v%d, 3, 1\n v_add_u32 v2, v2, v3" % (vL, vL))
    P("s_and_b32 s5, s%d, 1\n s_lshl_b32 s5, s5, 8\n s_lshl_b32 s4, s4, 1\n s_add_u32 s5, s5, s4\n v_add_u32 v2, s5, v2\n v_lshlrev_b32 v2, 13, v2" % sWV)
    P("v_and_b32 v3, 7, v%d\n v_lshl_add_u32 v2, v3, 7, v2\n s_and_b32 s5, s2, 7\n s_lshl_b32 s5, s5, 10\n v_add_u32 v38, s5, v2" % vL)
    P("s_lshr_b32 s4, s2, 3\n s_lshl_b32 s4, s4, 5\n s_lshl_b32 s6, s%d, 3\n s_add_u32 s4, s4, s6\n v_lshrrev_b32 v2, 3, v%d\n v_add_u32 v2, s4, v2\n v_lshlrev_b32 v2, 13, v2" % (sWV, vL))
    P("v_lshl_add_u32 v2, v3, 7, v2\n v_add_u32 v41, s5, v2")
    P("s_waitcnt lgkmcnt(0)")
    P("s_cmp_lt_u32 s%d, 2\n s_cselect_b32 s54, s44, s46\n s_cselect_b32 s55, s45, s47" % sWV)
    srd(P, sPF, 54, 512 * 8192)
    srd(P, sWQ, 56, 1024 * 8192)
    srd(P, sXI, 40, 2048 * 2048)
    srd(P, sX, 42, 2048 * 1024)
    P("s_cmp_eq_u32 s%d, 0\n s_cselect_b32 s44, s44, s46\n s_cselect_b32 s45, s45, s47" % sISV)
    srd(P, sW, 44, 512 * 8192)
    srd(P, sW1, 48, 1024 * 7168)
    srd(P, sWS, 50, WS_END)
    for r in range(2):
        for hh in range(2):
            q = 128 + 8 * r + 4 * hh
            P("buffer_load_dwordx4 v[%d:%d], v7, s[%d:%d], 0 offen offset:%d %s" % (q, q + 3, sXI, sXI + 3, 2048 * r + 16 * hh, NT))
    P("buffer_load_dword v36, v38, s[%d:%d], 0 offen %s" % (sPF, sPF + 3, NT))
    P("buffer_load_dword v37, v39, s[%d:%d], 0 offen" % (sX, sX + 3))
    P("buffer_load_dword v40, v39, s[%d:%d], 0 offen offset:512" % (sX, sX + 3))
    for n in range(8):
        P("s_mov_b32 s5, %d" % (n * 8 * 7168))
        P("buffer_load_dwordx4 v[%d:%d], v33, s[%d:%d], s5 offen" % (144 + 4 * n, 147 + 4 * n, sW1, sW1 + 3))
    P("s_lshl_b32 s%d, s%d, 13" % (sM0X, sWV))
    P("s_add_u32 s%d, s%d, %d" % (sM0W, sM0X, LW[0]))
    P("s_mov_b32 s%d, 0\n s_mov_b32 s%d, 0" % (sKX, sKW))

    def dma(b, t):
        g = []
        for (vb, sd, sm0, sk) in ((vDX, sX, sM0X, sKX), (vDW, sW, sM0W, sKW)):
            for n in range(8):
                x = []
                if n % 4 == 0:
                    x.append(I("s_add_u32 m0, s%d, %d" % (sm0, b * 32768 + (n // 4) * 4096)))
                    x.append(I("s_nop 0"))
                x.append(I("buffer_load_dwordx4 v%d, s[%d:%d], s%d offen offset:%d lds" % (vb + n, sd, sd + 3, sk, 1024 * (n & 3)), tag=t))
                g.append(x)
        g.append([I("s_add_u32 s%d, s%d, 128" % (sKX, sKX)), I("s_add_u32 s%d, s%d, %d" % (sKW, sKW, 64 * 8192))])
        return g
    P("v_and_b32 v2, 31, v%d\n v_lshrrev_b32 v3, 5, v%d\n v_bfe_u32 v4, v%d, 1, 3" % (vL, vL, vL))
    P("s_lshr_b32 s5, s%d, 1\n s_lshl_b32 s5, s5, 14" % sWV)
    P("v_lshlrev_b32 v2, 7, v2\n v_add_u32 v2, s5, v2")
    P("v_xor_b32 v3, v3, v4")
    for s in range(4):
        P("v_xor_b32 v5, %d, v3\n v_lshl_add_u32 v%d, v5, 4, v2" % (2 * s, vRX + s))
    P("v_bfe_u32 v2, v%d, 2, 2" % vL)
    P("v_lshrrev_b32 v3, 5, v%d\n v_lshl_add_u32 v3, v3, 3, v2\n v_lshlrev_b32 v3, 9, v3" % vL)
    P("v_bfe_u32 v4, v%d, 4, 1\n v_lshl_add_u32 v3, v4, 5, v3" % vL)
    P("v_and_b32 v4, 3, v%d\n v_lshl_add_u32 v3, v4, 3, v3" % vL)
    P("s_and_b32 s5, s%d, 1\n s_lshl_b32 s5, s5, 8\n s_add_u32 s5, s5, %d\n v_add_u32 v3, s5, v3" % (sWV, LW[0]))
    for i in range(4):
        P("v_xor_b32 v5, %d, v2\n v_lshl_add_u32 v%d, v5, 6, v3" % (i, vRW + i))
    for i in range(256):
        P("v_accvgpr_write_b32 a%d, 0" % i)
    ST(P)
    P("s_waitcnt vmcnt(11)")
    ST(P)
    E = 176
    for r in range(2):
        for d in range(8):
            src = 128 + 8 * r + d
            P("v_lshlrev_b32 v%d, 16, v%d" % (E + 16 * r + 2 * d, src))
            P("v_and_b32 v%d, 0xffff0000, v%d" % (E + 16 * r + 2 * d + 1, src))
    T = 208
    for r in range(2):
        P("v_add_f32 v%d, v%d, v%d" % (T + r, E + 16 * r, E + 16 * r + 1))
        for e in range(2, 16):
            P("v_add_f32 v%d, v%d, v%d" % (T + r, T + r, E + 16 * r + e))
    for r in range(2): wave_allreduce(P, T + r, T + 8)
    for r in range(2):
        P("v_mul_f32 v%d, 0x3a800000, v%d" % (T + r, T + r))
        P("v_sub_f32 v%d, v%d, v%d\n v_mul_f32 v%d, v%d, v%d" % (T + 8, E + 16 * r, T + r, T + 2 + r, T + 8, T + 8))
        for e in range(1, 16):
            P("v_sub_f32 v%d, v%d, v%d\n v_fmac_f32 v%d, v%d, v%d" % (T + 8, E + 16 * r + e, T + r, T + 2 + r, T + 8, T + 8))
    for r in range(2): wave_allreduce(P, T + 2 + r, T + 8)
    def rbf(x):
        P("v_cvt_pk_bf16_f32 v%d, v%d, v%d\n v_lshlrev_b32 v%d, 16, v%d" % (x, x, x, x, x))
    for r in range(2):
        P("v_mul_f32 v%d, 0x3a800000, v%d" % (T + 2 + r, T + 2 + r))
        rbf(T + r); rbf(T + 2 + r)
        P("v_add_f32 v%d, 0x3727c5ac, v%d" % (T + 2 + r, T + 2 + r)); rbf(T + 2 + r)
        P("v_sqrt_f32 v%d, v%d\n s_nop 0" % (T + 2 + r, T + 2 + r)); rbf(T + 2 + r)
        P("v_rcp_f32 v%d, v%d\n s_nop 0" % (T + 2 + r, T + 2 + r))
        for d in range(8):
            e0 = E + 16 * r + 2 * d
            P("v_sub_f32 v%d, v%d, v%d\n v_sub_f32 v%d, v%d, v%d" % (e0, e0, T + r, e0 + 1, e0 + 1, T + r))
            P("v_cvt_pk_bf16_f32 v%d, v%d, v%d" % (T + 8, e0, e0 + 1))
            P("v_lshlrev_b32 v%d, 16, v%d\n v_and_b32 v%d, 0xffff0000, v%d" % (e0, T + 8, e0 + 1, T + 8))
            P("v_mul_f32 v%d, v%d, v%d\n v_mul_f32 v%d, v%d, v%d" % (e0, e0, T + 2 + r, e0 + 1, e0 + 1, T + 2 + r))
            P("v_cvt_pk_bf16_f32 v%d, v%d, v%d" % (128 + 8 * r + d, e0, e0 + 1))
    P("v_and_b32 v2, 7, v%d\n s_lshl_b32 s5, s%d, 1\n v_xor_b32 v2, s5, v2" % (vL, sWV))
    P("v_lshlrev_b32 v3, 8, v%d\n v_add_u32 v3, %d, v3" % (vL, LSCR))
    P("v_lshl_add_u32 v4, v2, 4, v3\n v_xor_b32 v2, 1, v2\n v_lshl_add_u32 v5, v2, 4, v3")
    for r in range(2):
        for hh in range(2):
            q = 128 + 8 * r + 4 * hh
            P("ds_write_b128 v%d, v[%d:%d] offset:%d" % (4 + r, q, q + 3, 128 * hh))
    for t in range(2):
        for x in dma(t, t): P.add(x)
    P("s_waitcnt vmcnt(32)")
    C = 176
    for n in range(8):
        for d in range(4):
            src = 144 + 4 * n + d
            if n == 0:
                P("v_lshlrev_b32 v%d, 16, v%d\n v_and_b32 v%d, 0xffff0000, v%d" % (C + 2 * d, src, C + 2 * d + 1, src))
            else:
                P("v_lshlrev_b32 v%d, 16, v%d\n v_and_b32 v%d, 0xffff0000, v%d" % (T, src, T + 1, src))
                P("v_add_f32 v%d, v%d, v%d\n v_add_f32 v%d, v%d, v%d" % (C + 2 * d, C + 2 * d, T, C + 2 * d + 1, C + 2 * d + 1, T + 1))
    P("s_nop 1")
    for e in range(8):
        P("v_add_f32_dpp v%d, v%d, v%d row_ror:8 row_mask:0xf bank_mask:0xf" % (C + e, C + e, C + e))
    for sw in ("v_permlane16_swap_b32", "v_permlane32_swap_b32"):
        for e in range(8): P("v_mov_b32 v%d, v%d" % (C + 8 + e, C + e))
        P("s_nop 1")
        for e in range(8): P("%s v%d, v%d" % (sw, C + e, C + 8 + e))
        P("s_nop 0")
        for e in range(8): P("v_add_f32 v%d, v%d, v%d" % (C + e, C + e, C + 8 + e))
    P("v_and_b32 v2, 7, v%d\n v_lshlrev_b32 v2, 5, v2\n s_lshl_b32 s5, s%d, 8\n s_add_u32 s5, s5, %d\n v_add_u32 v2, s5, v2" % (vL, sWV, LCS))
    P("ds_write_b128 v2, v[%d:%d]\n ds_write_b128 v2, v[%d:%d] offset:16" % (C, C + 3, C + 4, C + 7))
    P("s_waitcnt lgkmcnt(0)\n s_barrier")
    P("v_lshrrev_b32 v2, 3, v%d\n s_lshl_b32 s5, s%d, 5\n v_add_u32 v2, s5, v2" % (vL, sWV))
    P("v_lshrrev_b32 v3, 4, v%d\n v_and_b32 v4, 7, v%d\n v_xor_b32 v3, v3, v4" % (vL, vL))
    P("v_lshlrev_b32 v5, 7, v2\n v_add_u32 v5, %d, v5" % LSCR)
    P("v_lshl_add_u32 v6, v3, 4, v5\n v_xor_b32 v3, 4, v3\n v_lshl_add_u32 v7, v3, 4, v5")
    for n in range(4):
        P("ds_read_b128 v[%d:%d], v%d offset:%d" % (128 + 4 * n, 131 + 4 * n, 6 + (n & 1), 1024 * n))
    P("v_lshlrev_b32 v34, 2, v%d\n v_add_u32 v35, %d, v34" % (vL, LCS))
    for w in range(4):
        P("ds_read_b32 v%d, v35 offset:%d" % (144 + w, 256 * w))
    P("v_lshrrev_b32 v3, 1, v2\n v_lshlrev_b32 v3, 10, v3\n v_and_b32 v2, 1, v2\n v_lshl_add_u32 v3, v2, 9, v3\n v_lshl_add_u32 v3, v4, 4, v3")
    P("s_lshr_b32 s5, s2, 2\n s_lshl_b32 s5, s5, 16\n s_and_b32 s6, s2, 3\n s_lshl_b32 s6, s6, 7\n s_add_u32 s5, s5, s6\n s_add_u32 s5, s5, %d" % WS_XN)
    P("v_add_u32 v3, s5, v3")
    P("s_waitcnt lgkmcnt(0)")
    for n in range(4):
        P("s_mov_b32 s5, %d" % (4096 * n))
        P("buffer_store_dwordx4 v[%d:%d], v3, s[%d:%d], s5 offen" % (128 + 4 * n, 131 + 4 * n, sWS, sWS + 3))
    P("v_add_f32 v144, v144, v145\n v_add_f32 v146, v146, v147\n v_add_f32 v144, v144, v146")
    P("s_mul_i32 s5, s52, %d\n s_lshl_b32 s6, s53, 8\n s_add_u32 s5, s5, s6\n s_add_u32 s5, s5, %d" % (3584 * 4, WS_CS1))
    P("s_cmp_lt_u32 s2, 224\n s_cselect_b32 s6, 0, 1\n s_add_u32 s6, s6, s%d\n s_cmp_eq_u32 s6, 0\n s_cselect_b32 s5, s5, 0x%x" % (sWV, WS_END))
    P("v_add_u32 v34, s5, v34")
    P("buffer_store_dword v144, v34, s[%d:%d], 0 offen" % (sWS, sWS + 3))
    P("v_mov_b32 v148, -1\n v_mov_b32 v149, -1\n v_mov_b32 v150, -1\n v_mov_b32 v151, -1")
    P("v_lshlrev_b32 v2, 4, v%d\n s_lshl_b32 s5, s2, 16\n s_lshl_b32 s6, s%d, 14\n s_add_u32 s5, s5, s6\n s_add_u32 s5, s5, %d" % (vL, sWV, WS_EX3))
    for n in range(16):
        if n and n % 4 == 0: P("s_add_u32 s5, s5, 4096")
        P("buffer_store_dwordx4 v[148:151], v2, s[%d:%d], s5 offen offset:%d" % (sWS, sWS + 3, 1024 * (n & 3)))
    ST(P)
    P("s_waitcnt vmcnt(37)\n s_barrier")
    ST(P)
    if STAMP_ON[0]: P("s_waitcnt lgkmcnt(0)")

    def reads(b, s, p):
        g = []
        for i in range(4):
            for r2 in range(2):
                q = FW[p] + 4 * i + 2 * r2
                g.append(I("ds_read_b64_tr_b16 v[%d:%d], v%d offset:%d" % (q, q + 1, vRW + i, b * 32768 + (16 * s + 4 * r2) * 512)))
            q = FX[p] + 4 * i
            g.append(I("ds_read_b128 v[%d:%d], v%d offset:%d" % (q, q + 3, vRX + s, b * 32768 + 4096 * i)))
        return g
    def mfmas(p, isv):
        g = []
        order = sorted([(i, j) for i in range(4) for j in range(4)], key=lambda x: (max(x), x))
        for (i, j) in order:
            w = vr(FW[p] + 4 * i, 4); x = vr(FX[p] + 4 * j, 4)
            d = ar(16 * (4 * i + j), 16)
            g.append(mfma32(d, x, w) if isv else mfma32(d, w, x))
        return g
    def stage(b, t, isv, do_dma, do_next):
        S = []
        for s in range(4):
            p = s & 1
            if s < 3:
                f = reads(b, s + 1, p ^ 1)
                S += interleave(mfmas(p, isv), f, per=1)
                if s == 2 and do_next:
                    S.append(I("s_waitcnt vmcnt(0) lgkmcnt(0)"))
                    S.append(I("s_barrier"))
            else:
                f = []
                if do_next: f += reads(b ^ 1, 0, 0)
                if do_dma: f += dma(b, t + 2)
                S += interleave(mfmas(p, isv), f)
        return S
    P.add(reads(0, 0, 0))
    pend0 = [set(x.w) for x in reads(0, 0, 0)]
    a.kernel(name)
    a.seg(P)
    a("s_cmp_eq_u32 s%d, 1\n s_cbranch_scc1 %s_v" % (sISV, name))
    EP = Seg("epi")
    EP("buffer_load_dword v36, v41, s[%d:%d], 0 offen" % (sWQ, sWQ + 3))
    EP("s_nop 7\n s_nop 3")
    ST(EP)
    EP("s_and_b32 s5, s%d, 1\n s_lshl_b32 s6, s%d, 1\n s_add_u32 s5, s5, s6\n s_lshl_b32 s5, s5, 6" % (sWV, sHP))
    EP("s_lshl_b32 s6, s%d, 3\n s_add_u32 s5, s5, s6\n s_lshr_b32 s6, s%d, 1\n s_lshl_b32 s6, s6, 2\n s_add_u32 s5, s5, s6" % (sTT, sWV))
    EP("s_lshl_b32 s5, s5, 13\n s_mul_i32 s6, s%d, %d\n s_add_u32 s5, s5, s6\n s_add_u32 s5, s5, %d" % (sISV, WS_VF - WS_KF, WS_KF))
    EP("v_lshlrev_b32 v2, 4, v%d" % vL)
    k = 0
    for j in range(4):
        for i in range(4):
            for hf in range(2):
                t0 = 128 + (k % 4) * 8; o0 = 160 + (k % 8) * 4
                src = 16 * (4 * i + j) + 8 * hf
                for e in range(8): EP("v_accvgpr_read_b32 v%d, a%d" % (t0 + e, src + e))
                for e in range(4): EP("v_cvt_pk_bf16_f32 v%d, v%d, v%d" % (o0 + e, t0 + 2 * e, t0 + 2 * e + 1))
                off = (2 * i + hf) * 1024
                if off == 0 or off == 4096:
                    EP("s_add_u32 s6, s5, %d" % (j * 8192 + off))
                EP("buffer_store_dwordx4 v[%d:%d], v2, s[%d:%d], s6 offen offset:%d" % (o0, o0 + 3, sWS, sWS + 3, off & 4095))
                k += 1
    ST(EP)
    if STAMP_ON[0]: EP("s_waitcnt vmcnt(0)")
    ST.flush(EP, 0)
    for isv in (0, 1):
        if isv: a("%s_v:" % name)
        lp = "%s_loop%d" % (name, isv)
        body = stage(0, 0, isv, 1, 1) + stage(1, 1, isv, 1, 1)
        body, pend = auto_lgkm(body, pend0)
        assert [sorted(x) for x in pend] == [sorted(x) for x in pend0]
        tail, _ = auto_lgkm(stage(0, 6, isv, 0, 1) + stage(1, 7, isv, 0, 0), pend0)
        a("s_mov_b32 s%d, 3" % sCNT)
        a(lp + ":")
        a.seg(body)
        lt = Seg()("s_sub_u32 s%d, s%d, 1\n s_cmp_lg_u32 s%d, 0\n s_cbranch_scc1 %s" % (sCNT, sCNT, sCNT, lp))
        a.seg(lt)
        a.seg(tail)
        if not isv: a("s_branch %s_epi" % name)
        check(name, P, body, lt, body, lt, tail, EP)
    a("%s_epi:" % name)
    a.seg(EP)
    a("%s:\n s_endpgm" % end)
    a.kd(name, 512, 256, 100)
    a.launch(name, 256, 256, LCS + 1024)

if __name__ == "__main__":
    a = Asm()
    gen_k1(a)
    open("k1.s", "w").write(a.text())
```

```python
from common import *
import math, struct

def f2u(x): return struct.unpack("<I", struct.pack("<f", x))[0]
QSCALE = f2u(math.log2(math.e) / math.sqrt(128.0))
THR = f2u(2.0 ** 20)

DBG = set()
def gen_k2(a, name="attn_kernel"):
    end = name + "_end"
    sWQ, sWS = 8, 16
    sWV, sHEAD, sI, sNA, sNB, sTRIA, sTRIB, sK1 = 28, 29, 30, 31, 32, 33, 34, 35
    sSLOT, sDSL, sSRC, sSRCMAX, sCNT, sTHR, sKW, sKX, sM0W, sWOFF = 36, 37, 38, 39, 40, 41, 42, 43, 44, 45
    sMASK = 48
    sTH2, sNEG = 26, 27
    vL, vL16, vRD, vNINF = 1, 8, 9, 10
    vL16B, vL16M, vC16 = 24, 25, 26
    vXA, vDW, vRW = 12, 16, 20
    SB = [[32, 48], [64, 80]]; NEGM = [96, 112]; PB = [[128, 136], [144, 152]]; TMP = 160; LR = [[176, 177], [178, 179]]
    vT = 180
    QR = [192, 224]
    ACC = 32; FW = [160, 176]; XR = 192
    OA = [0, 64]; KFR = 192; VFR = 224
    LWQ = 98304
    ST = Stamps(80)

    P = Seg("pro")
    P("s_cmp_ge_u32 s2, 256\n s_cbranch_scc1 %s" % end)
    ST(P)
    P("s_load_dwordx2 s[4:5], s[0:1], %d\n s_load_dwordx2 s[6:7], s[0:1], %d" % (P_WQ, P_WS))
    P("s_load_dwordx2 s[46:47], s[0:1], %d\n s_load_dwordx2 s[24:25], s[0:1], %d" % (P_WO, P_W2))
    P("v_and_b32 v%d, 63, v0\n v_lshrrev_b32 v2, 6, v0" % vL)
    P("s_and_b32 s3, s2, 7\n s_lshr_b32 s%d, s2, 3" % sI)
    P("v_readfirstlane_b32 s%d, v2" % sWV)
    P("s_lshr_b32 s%d, s%d, 3\n s_lshl_b32 s3, s3, 2\n s_add_u32 s%d, s%d, s3\n s_and_b32 s%d, s%d, 7" % (sHEAD, sI, sHEAD, sHEAD, sI, sI))
    P("s_lshl_b32 s3, s%d, 2\n s_add_u32 s%d, s3, 4\n s_sub_u32 s%d, 64, s3" % (sI, sNA, sNB))
    P("s_add_u32 s%d, s3, s%d" % (sTRIA, sWV))
    P("s_sub_u32 s%d, s%d, 4\n s_add_u32 s%d, s%d, s%d" % (sTRIB, sNB, sTRIB, sTRIB, sWV))
    P("v_lshlrev_b32 v%d, 4, v%d" % (vL16, vL))
    P("s_lshl_b32 s3, s%d, 16\n s_add_u32 s3, s3, %d\n v_add_u32 v%d, s3, v%d" % (sTRIA, WS_XN, vXA, vL16))
    P("s_lshl_b32 s3, s%d, 16\n s_add_u32 s3, s3, %d\n v_add_u32 v%d, s3, v%d" % (sTRIB, WS_XN, vXA + 1, vL16))
    P("v_lshrrev_b32 v2, 4, v%d\n v_and_b32 v3, 15, v%d\n v_lshlrev_b32 v4, 2, v2\n v_xor_b32 v3, v3, v4" % (vL, vL))
    P("s_lshl_b32 s3, s%d, 4\n v_add_u32 v2, s3, v2\n v_lshlrev_b32 v2, 13, v2\n v_lshl_add_u32 v2, v3, 4, v2" % sWV)
    P("s_lshl_b32 s3, s%d, 8\n v_add_u32 v2, s3, v2" % sHEAD)
    for n in range(4):
        P("v_add_u32 v%d, %d, v2" % (vDW + n, 4 * 8192 * n - 1024 * n))
    P("s_lshl_b32 s%d, s%d, 12\n s_add_u32 s%d, s%d, %d" % (sM0W, sWV, sM0W, sM0W, LWQ))
    P("s_mov_b32 s%d, 0\n s_mov_b32 s%d, 0" % (sKW, sKX))
    P("s_waitcnt lgkmcnt(0)")
    srd(P, sWQ, 4, 1024 * 8192)
    srd(P, sWS, 6, WS_END)
    srd(P, 12, 46, 4096 * 2048)
    srd(P, 20, 24, 3584 * 2048)
    P("v_lshlrev_b32 v27, 7, v0\n s_lshl_b32 s3, s2, 15\n v_add_u32 v27, s3, v27")

    def dmaW(b, t):
        g = []
        for n in range(4):
            x = []
            if n == 0:
                x += [I("s_add_u32 m0, s%d, %d" % (sM0W, b * 16384)), I("s_nop 0")]
            x.append(I("buffer_load_dwordx4 v%d, s[%d:%d], s%d offen offset:%d lds" % (vDW + n, sWQ, sWQ + 3, sKW, 1024 * n), tag=t))
            if n == 3: x.append(I("s_add_u32 s%d, s%d, %d" % (sKW, sKW, 64 * 8192)))
            g.append(x)
        return g
    def xload(t, s):
        g = []
        for b in range(2):
            q = XR + 8 * (4 * (t & 1) + s) + 4 * b
            x = [I("buffer_load_dwordx4 a[%d:%d], v%d, s[%d:%d], s%d offen offset:%d" % (q, q + 3, vXA + b, sWS, sWS + 3, sKX, 1024 * s))]
            if b == 1: x[0].also = regs_of(ar(q - 4, 4))
            if s == 3 and b == 1: x.append(I("s_add_u32 s%d, s%d, 4096" % (sKX, sKX)))
            g.append(x)
        return g
    def flat(g):
        o = []
        for x in g: o += x if isinstance(x, list) else [x]
        return o
    pro_vm = []
    pro_vm += dmaW(0, 0)
    for t in (0, 1):
        for s in range(3): pro_vm += xload(t, s)
        pro_vm += dmaW(t + 1, t + 1)
        pro_vm += xload(t, 3)
    P.add(flat(pro_vm))
    P("v_bfe_u32 v2, v%d, 2, 2" % vL)
    P("v_lshrrev_b32 v3, 5, v%d\n v_lshl_add_u32 v3, v3, 3, v2\n v_lshlrev_b32 v3, 8, v3" % vL)
    P("v_bfe_u32 v4, v%d, 4, 1\n v_lshl_add_u32 v3, v4, 5, v3" % vL)
    P("v_and_b32 v4, 3, v%d\n v_lshl_add_u32 v3, v4, 3, v3\n v_add_u32 v3, %d, v3" % (vL, LWQ))
    for i in range(4):
        P("v_xor_b32 v5, %d, v2\n v_lshl_add_u32 v%d, v5, 6, v3" % (i, vRW + i))
    for i in range(128): P("v_mov_b32 v%d, 0" % (ACC + i))
    for i in range(128): P("v_accvgpr_write_b32 a%d, 0" % i)
    P("v_and_b32 v2, 31, v%d\n v_lshrrev_b32 v3, 5, v%d\n v_lshlrev_b32 v3, 2, v3\n v_sub_u32 v2, v2, v3" % (vL, vL))
    for r in range(16):
        P("v_cmp_gt_i32 s[%d:%d], %d, v2" % (sMASK + 2 * r, sMASK + 2 * r + 1, 8 * (r >> 2) + (r & 3)))
    P("v_mov_b32 v%d, 0xff800000\n s_mov_b32 s%d, 0x%x\n s_mov_b32 s%d, 0xbf800000" % (vNINF, sTHR, THR, sNEG))
    P("s_lshl_b32 s%d, s%d, 13" % (sWOFF, sWV))
    P("s_lshl_b32 s3, s%d, 19" % sHEAD)
    P("s_mov_b32 s4, %d\n s_cmp_lt_u32 s%d, 2\n s_cselect_b32 s4, %d, s4" % (WS_VF - 2 * 8192, sWV, WS_KF + 3 * 8192))
    P("s_add_u32 s%d, s3, s4\n s_add_u32 s%d, s%d, s%d" % (sSRC, sSRC, sSRC, sWOFF))
    P("s_lshl_b32 s4, s%d, 13\n s_sub_u32 s4, s4, 16384\n s_add_u32 s%d, s%d, s4" % (sNB, sSRCMAX, sSRC))
    P("s_add_u32 s46, s3, %d\n s_add_u32 s46, s46, s%d" % (WS_KF, sWOFF))
    P("s_mov_b32 s47, 65536\n s_cmp_eq_u32 s%d, 0\n s_cselect_b32 s47, 73728, s47\n s_cmp_eq_u32 s%d, 1\n s_cselect_b32 s47, 98304, s47\n s_cmp_eq_u32 s%d, 2\n s_cselect_b32 s47, 106496, s47" % (sWV, sWV, sWV))
    P("s_mov_b32 s%d, s%d" % (sDSL, sWOFF))
    P("v_add_u32 v%d, 4096, v%d\n v_subrev_u32 v%d, s%d, v%d\n v_mov_b32 v%d, 0x10000" % (vL16B, vL16, vL16M, sWOFF, vL16, vC16))
    ST(P)

    def dmaKV(src, dst, tag, adv):
        g = []
        for n in range(8):
            x = []
            if n == 0: x += [I("s_mov_b32 m0, s%d" % dst), I("s_nop 0")]
            if n == 4: x += [I("s_add_u32 m0, s%d, 4096" % dst), I("s_add_u32 s3, s%d, 4096" % src)]
            x.append(I("buffer_load_dwordx4 v%d, s[%d:%d], s%d offen offset:%d lds" % (vL16, sWS, sWS + 3, src if n < 4 else 3, 1024 * (n & 3)), tag=tag))
            if n == 7 and adv:
                x += [I("s_add_u32 s%d, s%d, 16384" % (sSRC, sSRC)), I("s_min_u32 s%d, s%d, s%d" % (sSRC, sSRC, sSRCMAX)),
                      I("s_add_u32 s%d, s%d, 32768" % (sDSL, sDSL)), I("s_and_b32 s%d, s%d, 0x1ffff" % (sDSL, sDSL))]
            g.append(x)
        return g
    def wreads(b, s, p):
        g = []
        for i in range(4):
            for r2 in range(2):
                q = FW[p] + 4 * i + 2 * r2
                g.append(I("ds_read_b64_tr_b16 v[%d:%d], v%d offset:%d" % (q, q + 1, vRW + i, b * 16384 + (16 * s + 4 * r2) * 256)))
        return group(g, 4)
    def qstage(t, last_iter):
        S = []
        for s in range(4):
            p = s & 1
            m = []
            for i in range(4):
                for b in range(2):
                    q = XR + 8 * (4 * (t & 1) + s) + 4 * b
                    m.append(mfma32(vr(ACC + 16 * (2 * i + b), 16), vr(FW[p] + 4 * i, 4), ar(q, 4)))
            f = []
            if s < 3: f += wreads(t & 3, s + 1, p ^ 1)
            elif t < 15: f += wreads((t + 1) & 3, 0, 0)
            ex = []
            if s == 3:
                if t + 3 < 16: ex += dmaW((t + 3) & 3, t + 3)
                elif t == 13: ex += dmaKV(46, 47, 100, False)
                elif t in (14, 15): ex += dmaKV(sSRC, sDSL, 101 + t - 14, True)
            S += weave(m, merge(f, ex) if ex else f, endgap=1)
            if t + 2 < 16: S += flat(xload(t + 2, s))
            if s == 2 and t < 15:
                S.append(WaitTag(t + 1)); S.append(I("s_barrier"))
        return S
    plg = []; pvm = [(set(x.w) | set(getattr(x, "also", ())), x.tag) for x in flat(pro_vm) if x.kind == "vm"]
    first, plg, pvm = auto_waits([WaitTag(0), I("s_barrier")] + wreads(0, 0, 0), plg, pvm)
    P.add(first)
    ST(P)
    if STAMP_ON[0]:
        P("s_waitcnt lgkmcnt(0)"); plg = []
    raw = lambda: qstage(0, False) + qstage(1, False) + qstage(2, False) + qstage(3, False)
    b1, plg1, pvm1 = auto_waits(raw(), plg, pvm)
    pvm1 = shift_tags(pvm1, 4)
    qbody, plg2, pvm2 = auto_waits(raw(), plg1, pvm1)
    if not STAMP_ON[0]:
        assert [x.text for x in b1] == [x.text for x in qbody]
    pvm2 = shift_tags(pvm2, 4 - 12)
    qlt = Seg()("s_sub_u32 s%d, s%d, 1\n s_cmp_lg_u32 s%d, 0\n s_cbranch_scc1 %s_qloop" % (sCNT, sCNT, sCNT, name))
    qtail, plg3, pvm3 = auto_waits(qstage(12, True) + qstage(13, True) + qstage(14, True) + qstage(15, True), plg2, pvm2)

    A0 = Seg("aprol")
    ST(A0)
    A0("s_mov_b32 s4, 0x%x\n s_nop 7" % QSCALE)
    for i in range(4):
        for b in range(2):
            base = ACC + 16 * (2 * i + b)
            for e in range(16): A0("v_mul_f32 v%d, s4, v%d" % (base + e, base + e))
            for e in range(8): A0("v_cvt_pk_bf16_f32 v%d, v%d, v%d" % (QR[b] + 8 * i + e, base + 2 * e, base + 2 * e + 1))
    def kreads(off, vaddr=vRD):
        return group([I("ds_read_b128 a[%d:%d], v%d offset:%d" % (KFR + 4 * s, KFR + 4 * s + 3, vaddr, off + 1024 * s)) for s in range(8)], 4)
    def vreads(off):
        return group([I("ds_read_b128 a[%d:%d], v%d offset:%d" % (VFR + 4 * f, VFR + 4 * f + 3, vRD, off + 1024 * f)) for f in (0, 2, 4, 6, 1, 3, 5, 7)], 4)
    def qk(par, tiles, czero=False):
        m = []
        for s in range(8):
            for b in tiles:
                d = vr(SB[par][b], 16)
                c = None if s else ("0" if czero else vr(NEGM[b], 16))
                m.append(mfma32(d, ar(KFR + 4 * s, 4), vr(QR[b] + 4 * s, 4), c))
        return m
    def pv(par, tiles):
        m = []
        for ks in range(2):
            for dt in range(4):
                for b in tiles:
                    m.append(mfma32(ar(OA[b] + 16 * dt, 16), ar(VFR + 4 * (2 * dt + ks), 4), vr(PB[par][b] + 4 * ks, 4)))
        return m
    def softmax(par, tiles, zero_l=False):
        seq = []
        steps = [(b, e) for e in range(8) for b in tiles]
        def fin(idx):
            b, e = steps[idx]
            t0 = TMP + 2 * (idx % 8)
            lo = LR[par ^ 1][b]; ln = LR[par][b]
            o = []
            if e == 0 and zero_l:
                o.append(I("v_add_f32 v%d, v%d, v%d" % (ln, t0, t0 + 1)))
            else:
                o.append(I("v_add_f32 v%d, v%d, v%d" % (ln, lo if e == 0 else ln, t0)))
                o.append(I("v_cvt_pk_bf16_f32 v%d, v%d, v%d" % (PB[par][b] + e, t0, t0 + 1)))
                o.append(I("v_add_f32 v%d, v%d, v%d" % (ln, ln, t0 + 1)))
                return o
            o.append(I("v_cvt_pk_bf16_f32 v%d, v%d, v%d" % (PB[par][b] + e, t0, t0 + 1)))
            return o
        for idx, (b, e) in enumerate(steps):
            t0 = TMP + 2 * (idx % 8)
            ex = [I("v_exp_f32 v%d, v%d" % (t0, SB[par][b] + 2 * e)), I("v_exp_f32 v%d, v%d" % (t0 + 1, SB[par][b] + 2 * e + 1))]
            fn = fin(idx - 1) if idx else []
            seq.append(ex[0]); seq += fn[:1]; seq.append(ex[1]); seq += fn[1:]
        fn = fin(len(steps) - 1)
        if len(fn) == 2: seq.append(I("s_nop 0"))
        seq += fn
        return seq
    ool = Seg("ool")
    def maskbody(par, tiles, lab):
        for b in tiles:
            tri = (sTRIA, sTRIB)[b]
            l1 = "%s_n%d" % (lab, b); l2 = "%s_f%d" % (lab, b)
            ool("s_cmp_lt_u32 s%d, s%d\n s_cbranch_scc1 %s" % (sK1, tri, l1))
            ool("s_cmp_gt_u32 s%d, s%d\n s_cbranch_scc1 %s" % (sK1, tri, l2))
            for r in range(16):
                ool("v_cndmask_b32 v%d, v%d, v%d, s[%d:%d]" % (SB[par][b] + r, SB[par][b] + r, vNINF, sMASK + 2 * r, sMASK + 2 * r + 1))
            ool("s_branch %s\n%s:" % (l1, l2))
            for r in range(16): ool("v_mov_b32 v%d, v%d" % (SB[par][b] + r, vNINF))
            ool("%s:" % l1)
    def maskfix(S, par, tiles, tag):
        lab = "%s_mf%s" % (name, tag)
        S("s_cmp_ge_u32 s%d, s%d\n s_cbranch_scc1 %s\n%s_ret:" % (sK1, sTRIA if 0 in tiles else sTRIB, lab, lab))
        ool("%s:" % lab)
        maskbody(par, tiles, lab)
        ool("s_branch %s_ret" % lab)
    def rowmax(S, base, dst, tmp):
        S("v_max3_f32 v%d, v%d, v%d, v%d" % (dst, base, base + 1, base + 2))
        for e in range(3, 15, 2):
            S("v_max3_f32 v%d, v%d, v%d, v%d" % (dst, dst, base + e, base + e + 1))
        S("v_max_f32 v%d, v%d, v%d" % (dst, dst, base + 15))
        S("v_mov_b32 v%d, v%d\n s_nop 1\n v_permlane32_swap_b32 v%d, v%d\n s_nop 0\n v_max_f32 v%d, v%d, v%d" % (tmp, dst, dst, tmp, dst, dst, tmp))
    pa = []
    pa += [WaitTag(100), I("s_barrier"), I("v_add_u32 v%d, 65536, v%d" % (vRD, vL16))]
    pa += kreads(8192)
    pa += qk(0, [0, 1], czero=True)
    pa += kreads(32768)
    pa, plg4, pvm4 = auto_waits(pa, plg3, pvm3)
    A0.add(pa)
    A0("s_mov_b32 s%d, 0\n s_nop 3" % sK1)
    maskfix(A0, 0, [0], "p")
    for b in range(2):
        rowmax(A0, SB[0][b], vT, vT + 1)
        for r in range(16): A0("v_sub_f32 v%d, 0, v%d" % (NEGM[b] + r, vT))
        for r in range(16): A0("v_sub_f32 v%d, v%d, v%d" % (SB[0][b] + r, SB[0][b] + r, vT))
    A0("s_nop 1")
    pb = weave(qk(1, [0, 1]), softmax(0, [0, 1], zero_l=True)) + kreads(32768 + 8192)
    pb += [I("v_mov_b32 v%d, v%d" % (vRD, vL16)), I("s_mov_b32 s%d, 1" % sK1), I("s_nop 1"), WaitRegs(regs_of(ar(KFR, 4)))]
    pb, plg5, _ = auto_waits(pb, plg4, [])
    A0.add(pb)
    maskfix(A0, 1, [0], "q")
    ST(A0)
    kpend = plg5
    if STAMP_ON[0]: A0("s_waitcnt lgkmcnt(0)")

    def handler(par, tiles, tag):
        lab = "%s_h%s" % (name, tag)
        ool("%s:" % lab)
        if len(tiles) == 2:
            ool("v_cmp_lt_f32 vcc, s%d, v%d" % (sTHR, vT))
        else:
            ool("v_cmp_lt_f32 vcc, s%d, v%d" % (sTHR, LR[par][tiles[0]]))
        ool("s_cbranch_vccz %s_m" % lab)
        ool("s_nop 15")
        for b in tiles:
            rowmax(ool, SB[par][b], vT, vT + 1)
            ool("v_max_f32 v%d, 0, v%d" % (vT, vT))
            for base in (SB[par][b], SB[par ^ 1][b], NEGM[b]):
                for r in range(16): ool("v_sub_f32 v%d, v%d, v%d" % (base + r, base + r, vT))
            ool("v_sub_f32 v%d, 0, v%d\n v_exp_f32 v%d, v%d\n s_nop 0" % (vT, vT, vT, vT))
            ool("v_mul_f32 v%d, v%d, v%d" % (LR[par ^ 1][b], LR[par ^ 1][b], vT))
            for r in range(0, 64, 4):
                for e in range(4): ool("v_accvgpr_read_b32 v%d, a%d" % (TMP + e, OA[b] + r + e))
                for e in range(4): ool("v_mul_f32 v%d, v%d, v%d" % (TMP + e, TMP + e, vT))
                for e in range(4): ool("v_accvgpr_write_b32 a%d, v%d" % (OA[b] + r + e, TMP + e))
            ool.add(softmax(par, [b]))
        ool("%s_m:" % lab)
        maskbody(par ^ 1, tiles, lab)
        ool("s_nop 1\n s_branch %s_ret" % lab)
        return lab
    def window(par, tiles, tag):
        sm = softmax(par ^ 1, tiles)
        m = qk(par, tiles) + pv(par, tiles)
        n = len(m); h = n // 2; st = h // 8
        pre = {}; mem = {}; post = {}
        def add(d, g, x): d.setdefault(g, []).extend(x if isinstance(x, list) else [x])
        vr_ = vreads(16384 + 8192 * par); kr_ = kreads(8192 * par)
        if "noread" in DBG: vr_ = []; kr_ = []
        if "nosm" in DBG: sm = sm[-3:]
        for j, x in enumerate(vr_): add(mem, j * st, x)
        for j, x in enumerate(kr_): add(mem, h + j * st, x)
        add(pre, 4 * st - 1, WaitRegs(regs_of(ar(KFR + 16, 16))))
        add(pre, h - 1, WaitRegs(regs_of(ar(VFR, 4))))
        add(pre, h + 4 * st - 1, WaitRegs(regs_of(ar(VFR + 4, 4))))
        add(pre, n - 1, WaitRegs(regs_of(ar(KFR, 4))))
        sc = {}
        if par == 0:
            if "nobar" not in DBG: sc[0] = [I("s_waitcnt vmcnt(8)"), I("s_barrier")]
            sc[1] = I("s_mov_b32 m0, s%d" % sDSL)
            dslots = (1, 5, 9, 13)
        else:
            sc[1] = I("s_add_u32 m0, s%d, 4096" % sDSL)
            dslots = (1, 4, 6, 9)
            sc[10] = I("s_add_u32 s%d, s%d, 16384" % (sSRC, sSRC))
            sc[12] = I("s_min_u32 s%d, s%d, s%d" % (sSRC, sSRC, sSRCMAX))
            sc[13] = I("s_add_u32 s%d, s%d, 32768" % (sDSL, sDSL))
            sc[14] = I("s_and_b32 s%d, s%d, 0x1ffff" % (sDSL, sDSL))
        sc[2] = I("s_add_u32 s%d, s%d, 1" % (sK1, sK1))
        sc[4] = I("s_cmp_ge_u32 s%d, s%d" % (sK1, sTRIA if 0 in tiles else sTRIB))
        sc[5] = I("s_cselect_b32 s%d, s%d, s%d" % (sTH2, sNEG, sTHR))
        for k_, x in sc.items(): add(pre, k_ * st, x)
        if "nodma" not in DBG:
            for j, g in enumerate(dslots):
                add(mem, g * st, I("buffer_load_dwordx4 v%d, s[%d:%d], s%d offen offset:%d lds" % (vL16 if par == 0 else vL16B, sWS, sWS + 3, sSRC, 1024 * j)))
        lab = handler(par ^ 1, tiles, tag)
        if len(tiles) == 2:
            sm = sm + [I("v_max_f32 v%d, v%d, v%d" % (vT, LR[par ^ 1][0], LR[par ^ 1][1])), I("v_cmp_lt_f32 vcc, s%d, v%d" % (sTH2, vT))]
        else:
            sm = sm + [I("v_cmp_lt_f32 vcc, s%d, v%d" % (sTH2, LR[par ^ 1][tiles[0]]))]
        tail = []
        if par == 1: tail.append(I("v_xad_u32 v%d, s%d, v%d, v%d" % (vRD, sDSL, vC16, vL16M)))
        body = gaps_schedule(m[:-1], pre, mem, sm)
        body += [m[-1]] + pre.get(n - 1, []) + mem.get(n - 1, []) + tail + [I("s_cbranch_vccnz %s" % lab), I("%s_ret:" % lab)]
        return body
    def loop(tiles, tag):
        body = window(0, tiles, tag + "0") + window(1, tiles, tag + "1")
        body, pl, _ = auto_waits(body, kpend, [])
        assert DBG or [sorted(x) for x in pl] == [sorted(x) for x in kpend][-len(pl):]
        return body
    dual = loop([0, 1], "d"); solo = loop([1], "s")
    def epi(b, tri):
        S = Seg()
        l = LR[0][b]
        S("s_nop 7\n v_mov_b32 v%d, v%d\n s_nop 1\n v_permlane32_swap_b32 v%d, v%d\n s_nop 0\n v_add_f32 v%d, v%d, v%d" % (vT, l, l, vT, l, l, vT))
        S("v_rcp_f32 v%d, v%d" % (l, l))
        S("s_lshl_b32 s4, s%d, 18\n s_lshl_b32 s5, s%d, 13\n s_add_u32 s4, s4, s5\n s_add_u32 s4, s4, %d\n s_add_u32 s5, s4, 4096" % (tri, sHEAD, WS_CTX))
        for f in range(8):
            t0 = SB[f & 1][0]; o0 = PB[(f >> 1) & 1][0] + 4 * (f & 1)
            for e in range(8): S("v_accvgpr_read_b32 v%d, a%d" % (t0 + e, OA[b] + 8 * f + e))
            for e in range(8): S("v_mul_f32 v%d, v%d, v%d" % (t0 + e, t0 + e, l))
            for e in range(4): S("v_cvt_pk_bf16_f32 v%d, v%d, v%d" % (o0 + e, t0 + 2 * e, t0 + 2 * e + 1))
            S("buffer_store_dwordx4 v[%d:%d], v%d, s[%d:%d], s%d offen offset:%d" % (o0, o0 + 3, vL16, sWS, sWS + 3, 4 + (f >> 2), 1024 * (f & 3)))
        return S
    EA = epi(0, sTRIA); EB = epi(1, sTRIB)
    if "nopf" not in DBG:
        EA("buffer_load_dword v28, v27, s[12:15], 0 offen\n buffer_load_dword v29, v27, s[20:23], 0 offen")
    dl = Seg()("s_cmp_le_u32 s%d, s%d\n s_cbranch_scc1 %s_dloop" % (sK1, sNA, name))
    sl = Seg()("s_cmp_le_u32 s%d, s%d\n s_cbranch_scc1 %s_sloop" % (sK1, sNB, name))
    FIN = Seg()
    ST(EA)
    ST(FIN)
    if STAMP_ON[0]: FIN("s_waitcnt vmcnt(0)")
    ST.flush(FIN, 1)

    a.kernel(name)
    a.seg(P)
    a("s_mov_b32 s%d, 3\n%s_qloop:" % (sCNT, name))
    a.seg(qbody); a.seg(qlt); a.seg(qtail); a.seg(A0)
    a("%s_dloop:" % name); a.seg(dual); a.seg(dl)
    a.seg(EA)
    a("%s_sloop:" % name); a.seg(solo); a.seg(sl)
    a.seg(EB); a.seg(FIN)
    a("%s:\n s_endpgm" % end)
    a.seg(ool)
    if not DBG: check(name, P, qbody, qlt, qbody, qlt, qtail, A0, dual, dl, dual, dl, EA, solo, sl, solo, sl, EB, FIN)
    check(name + "_ool", ool)
    a.kd(name, 512, 256, 100)
    a.launch(name, 256, 256, 163840)

if __name__ == "__main__":
    a = Asm()
    gen_k2(a)
    open("k2.s", "w").write(a.text())
```
